```python
import torch

def _softmax(x, axis=-1):
    return torch.softmax(x, dim=axis)
def _gelu(x):
    return torch.nn.functional.gelu(x, approximate="tanh")
def _silu(x):
    return torch.nn.functional.silu(x)
def _sigmoid(x):
    return torch.sigmoid(x)
def _layernorm(x, axis=-1, eps=1e-5):
    m = x.mean(dim=axis, keepdim=True)
    v = x.var(dim=axis, keepdim=True, unbiased=False)
    return (x - m) / torch.sqrt(v + eps)
def _scatter_add(tgt, idx, src, axis=0):
    return tgt.clone().index_add_(axis, idx, src)
def _segment_sum(src, seg, n):
    out = torch.zeros((n,) + src.shape[1:], dtype=src.dtype)
    return out.index_add_(0, seg, src)
def _pad(x, pw):
    flat = tuple(v for pair in reversed(pw) for v in pair)
    return torch.nn.functional.pad(x, flat)

kernel_name = 'concat_heads__gqa_block_cached__gqa_block_cached__decode'

def setup_inputs():

    _w = (lambda a: (lambda t: t.to(torch.bfloat16) if t.is_floating_point() else t)(torch.as_tensor(a)))
    def _A_setup():
        B, Sq, D = 4, 1, 512
        Hq, Hkv, Sk, Dh = 32, 8, 16384, 128
        assert Hq % Hkv == 0, (Hq, Hkv)
        return {
            "x": _w((lambda *s: torch.randn(*s, dtype=torch.bfloat16) * 0.8)(B, Sq, D)),
            "k_cache": _w((lambda *s: torch.randn(*s, dtype=torch.bfloat16) * 0.8)(B, Hkv, Sk, Dh)),
            "v_cache": _w((lambda *s: torch.randn(*s, dtype=torch.bfloat16) * 0.05)(B, Hkv, Sk, Dh)),
            "wq": _w((lambda *s: torch.randn(*s, dtype=torch.bfloat16) * 0.8)(D, Hq * Dh) * (D ** -0.5)),
            "wo": _w((lambda *s: torch.randn(*s, dtype=torch.bfloat16) * 0.05)(Hq * Dh, D) * ((Hq * Dh) ** -0.5)),
        }
    _A_in = _A_setup()

    def _B_setup():
        B, Sq, D = 4, 1, 512
        Hq, Hkv, Sk, Dh = 32, 8, 16384, 128
        assert Hq % Hkv == 0, (Hq, Hkv)
        return {
            "x": _w((lambda *s: torch.randn(*s, dtype=torch.bfloat16) * 0.8)(B, Sq, D)),
            "k_cache": _w((lambda *s: torch.randn(*s, dtype=torch.bfloat16) * 0.8)(B, Hkv, Sk, Dh)),
            "v_cache": _w((lambda *s: torch.randn(*s, dtype=torch.bfloat16) * 0.05)(B, Hkv, Sk, Dh)),
            "wq": _w((lambda *s: torch.randn(*s, dtype=torch.bfloat16) * 0.8)(D, Hq * Dh) * (D ** -0.5)),
            "wo": _w((lambda *s: torch.randn(*s, dtype=torch.bfloat16) * 0.05)(Hq * Dh, D) * ((Hq * Dh) ** -0.5)),
        }
    _B_in = _B_setup()

    return {
        "A_x": _A_in["x"],
        "A_k_cache": _A_in["k_cache"],
        "A_v_cache": _A_in["v_cache"],
        "A_wq": _A_in["wq"],
        "A_wo": _A_in["wo"],
        "B_x": _B_in["x"],
        "B_k_cache": _B_in["k_cache"],
        "B_v_cache": _B_in["v_cache"],
        "B_wq": _B_in["wq"],
        "B_wo": _B_in["wo"],
    }

def reference(A_x, A_k_cache, A_v_cache, A_wq, A_wo, B_x, B_k_cache, B_v_cache, B_wq, B_wo):
    def _A_ref(x, k_cache, v_cache, wq, wo):
        B, Sq, D = x.shape
        Hq, Dh = 32, 128
        Hkv = k_cache.shape[1]
        rep = Hq // Hkv
        q = (lambda x, *d: x.permute(*d))((x @ wq).reshape(B, Sq, Hq, Dh), 0, 2, 1, 3)
        k = (lambda x, n, axis: torch.repeat_interleave(x, n, dim=axis))(k_cache, rep, axis=1)
        v = (lambda x, n, axis: torch.repeat_interleave(x, n, dim=axis))(v_cache, rep, axis=1)
        scores = torch.einsum("bhqd,bhkd->bhqk", q, k) * (Dh ** -0.5)
        p = _softmax(scores, axis=-1)
        o = torch.einsum("bhqk,bhkd->bhqd", p, v)
        return (lambda x, *d: x.permute(*d))(o, 0, 2, 1, 3).reshape(B, Sq, Hq * Dh) @ wo

    def _B_ref(x, k_cache, v_cache, wq, wo):
        B, Sq, D = x.shape
        Hq, Dh = 32, 128
        Hkv = k_cache.shape[1]
        rep = Hq // Hkv
        q = (lambda x, *d: x.permute(*d))((x @ wq).reshape(B, Sq, Hq, Dh), 0, 2, 1, 3)
        k = (lambda x, n, axis: torch.repeat_interleave(x, n, dim=axis))(k_cache, rep, axis=1)
        v = (lambda x, n, axis: torch.repeat_interleave(x, n, dim=axis))(v_cache, rep, axis=1)
        scores = torch.einsum("bhqd,bhkd->bhqk", q, k) * (Dh ** -0.5)
        p = _softmax(scores, axis=-1)
        o = torch.einsum("bhqk,bhkd->bhqd", p, v)
        return (lambda x, *d: x.permute(*d))(o, 0, 2, 1, 3).reshape(B, Sq, Hq * Dh) @ wo

    a = _A_ref(A_x, A_k_cache, A_v_cache, A_wq, A_wo)
    b = _B_ref(B_x, B_k_cache, B_v_cache, B_wq, B_wo)
    return torch.concatenate([a, b], axis=-1)
```

```python
import sys, math, os, struct
NAME = "concat_heads__gqa_block_cached__gqa_block_cached__decode"
WS_BYTES = 553656320
STAMP_OFF = WS_BYTES - (1 << 20)

WS_Q = 0
WS_H1 = 1 << 20
WS_ML = WS_H1 + (256 << 10)
WS_H2 = WS_H1 + (512 << 10)
WS_USED = 2 << 20
L_QP = 0
L_QF = 4096
L_ML = 5120
L_SLAB = 8192
SLAB_STRIDE = 2176
HEAD_STRIDE = 528
LDS_BYTES = 32768

def f32bits(x):
    return struct.unpack("<I", struct.pack("<f", x))[0]

HEADER = """; Fused dual GQA decode (q-proj -> split-K flash decode -> out-proj), single persistent launch.
"""

def gen(S=2, stamps=False, kvflag="nt", wflag="nt", dry=False, POLL_MAX=200000, NH=7):
    L = []
    e = L.append
    kf = (" " + kvflag) if kvflag else ""
    wf = (" " + wflag) if wflag else ""
    def R(i, n=4): return f"v[{i}:{i+n-1}]"
    def nop(n):
        while n > 0:
            k = min(n, 16); e(f"  s_nop {k-1}"); n -= k
    vTID, vLANE, vKOFF, vVOFF, vM, vL = 0, 1, 2, 3, 4, 5
    vT0, vT1, vT2, vT3, vT4, vT5 = 6, 7, 8, 9, 10, 11
    vP = 12; vS = 16; vQ = 24; vO = 40; vVT = 72
    vK = [104, 168]; vV = [136, 200]
    vG, vJ = 232, 233
    NV = 234
    sW, sH, sMU, sP, sB, sS = 3, 4, 5, 6, 7, 8
    sTEAM, sTMP, sTMP2, sOFF0, sOFF1, sNEXT, sLEFT, sISS = 9, 10, 11, 12, 13, 14, 15, 42
    sK, sV, sWQ, sWO, sX, sWS, sDBG, sOUT = 44, 48, 52, 56, 60, 64, 68, 72
    sC, sSELLO, sSELHI, sFULL, sPOLL = 76, 77, 78, 79, 80
    sST = 84
    def SR(i): return f"s[{i}:{i+3}]"
    def stamp(i):
        if stamps: e(f"  s_memrealtime s[{sST+2*i}:{sST+2*i+1}]")
    def stamp_store(slots):
        if not stamps: return
        e("  s_waitcnt lgkmcnt(0)")
        e(f"  s_mov_b32 s{sWS+2}, {WS_BYTES}")
        e(f"  s_lshl_b32 s{sTMP}, s2, 6")
        e(f"  s_add_u32 s{sTMP}, s{sTMP}, {STAMP_OFF}")
        e("  s_mov_b64 exec, 1")
        e(f"  v_mov_b32 v{vT2}, 0")
        for k, (slot, idx) in enumerate(slots):
            e(f"  v_mov_b32 v{vVT+2*k}, s{sST+2*idx}")
            e(f"  v_mov_b32 v{vVT+2*k+1}, s{sST+2*idx+1}")
            e(f"  buffer_store_dwordx2 {R(vVT+2*k,2)}, v{vT2}, {SR(sWS)}, s{sTMP} offen offset:{slot*8}")

    L.append(HEADER.rstrip())
    e(f"; @launch grid=(256,1,1) block=(512,1,1) lds={LDS_BYTES}")
    e('.amdgcn_target "amdgcn-amd-amdhsa--gfx950"')
    e(".text")
    e(f".globl {NAME}_kernel")
    e(".p2align 8")
    e(f".type {NAME}_kernel,@function")
    e(f"{NAME}_kernel:")
    e("  s_cmp_ge_u32 s2, 256")
    e("  s_cbranch_scc1 L_end")
    stamp(0)
    e("  s_load_dwordx16 s[16:31], s[0:1], 0")
    e("  s_load_dwordx8 s[32:39], s[0:1], 64")
    e("  s_load_dwordx2 s[40:41], s[0:1], 96")
    e(f"  v_lshrrev_b32 v{vT0}, 6, v0")
    e(f"  v_and_b32 v{vLANE}, 63, v0")
    e(f"  s_and_b32 s{sH}, s2, 7")
    e(f"  v_readfirstlane_b32 s{sW}, v{vT0}")
    e(f"  s_lshr_b32 s{sMU}, s2, 3")
    e(f"  s_lshr_b32 s{sP}, s{sMU}, 4")
    e(f"  s_and_b32 s{sMU}, s{sMU}, 15")
    e(f"  s_lshr_b32 s{sB}, s{sMU}, 2")
    e(f"  s_and_b32 s{sS}, s{sMU}, 3")
    e(f"  s_lshl_b32 s{sTEAM}, s{sP}, 3")
    e(f"  s_add_u32 s{sTEAM}, s{sTEAM}, s{sH}")
    e(f"  v_lshrrev_b32 v{vG}, 4, v{vLANE}")
    e(f"  v_and_b32 v{vJ}, 15, v{vLANE}")
    e(f"  v_lshlrev_b32 v{vVOFF}, 4, v{vLANE}")
    e(f"  v_and_b32 v{vT1}, 3, v{vLANE}")
    e(f"  v_bfe_u32 v{vT2}, v{vLANE}, 2, 2")
    e(f"  v_lshlrev_b32 v{vKOFF}, 10, v{vT1}")
    e(f"  v_lshl_add_u32 v{vKOFF}, v{vT2}, 8, v{vKOFF}")
    e(f"  v_lshl_add_u32 v{vKOFF}, v{vG}, 4, v{vKOFF}")
    e(f"  v_lshlrev_b32 v{vT3}, 2, v{vJ}")
    e(f"  v_lshl_add_u32 v{vT3}, v{vG}, 16, v{vT3}")
    e(f"  v_lshlrev_b32 v{vT4}, 10, v{vT1}")
    e(f"  v_lshl_add_u32 v{vT4}, v{vG}, 4, v{vT4}")
    e(f"  s_lshl_b32 s{sTMP}, s{sW}, 19")
    e(f"  s_lshl_b32 s{sTMP2}, s{sH}, 10")
    e(f"  s_add_u32 s{sTMP}, s{sTMP}, s{sTMP2}")
    e(f"  s_lshl_b32 s{sTMP2}, s{sMU}, 6")
    e(f"  s_add_u32 s{sTMP}, s{sTMP}, s{sTMP2}")
    e(f"  s_lshl_b32 s{sTMP2}, s{sW}, 7")
    e(f"  s_lshl_b32 s{sNEXT}, s{sB}, 3")
    e(f"  s_add_u32 s{sNEXT}, s{sNEXT}, s{sH}")
    e(f"  s_lshl_b32 s{sNEXT}, s{sNEXT}, 2")
    e(f"  s_add_u32 s{sNEXT}, s{sNEXT}, s{sS}")
    e(f"  s_lshl_b32 s{sNEXT}, s{sNEXT}, 7")
    e(f"  s_add_u32 s{sNEXT}, s{sNEXT}, s{sW}")
    e(f"  s_lshl_b32 s{sNEXT}, s{sNEXT}, 13")
    e(f"  s_mov_b32 s{sFULL}, 0x8000000")
    for srd, nb in ((sK, f"s{sFULL}"), (sV, f"s{sFULL}"), (sWQ, 0x400000), (sWO, 0x400000), (sX, 4096), (sWS, WS_USED), (sDBG, 256), (sOUT, 8192)):
        e(f"  s_mov_b32 s{srd+2}, {nb}")
        e(f"  s_mov_b32 s{srd+3}, 0x20000")
    e(f"  s_cmp_eq_u32 s{sP}, 0")
    e("  s_waitcnt lgkmcnt(0)")
    e(f"  s_cselect_b64 s[{sWQ}:{sWQ+1}], s[22:23], s[32:33]")
    e(f"  s_cselect_b64 s[{sX}:{sX+1}], s[16:17], s[26:27]")
    e(f"  s_cselect_b64 s[{sK}:{sK+1}], s[18:19], s[28:29]")
    e(f"  s_cselect_b64 s[{sV}:{sV+1}], s[20:21], s[30:31]")
    e(f"  s_cselect_b64 s[{sWO}:{sWO+1}], s[24:25], s[34:35]")
    e(f"  s_mov_b64 s[{sWS}:{sWS+1}], s[40:41]")
    e(f"  s_mov_b64 s[{sDBG}:{sDBG+1}], s[38:39]")
    e(f"  s_mov_b64 s[{sOUT}:{sOUT+1}], s[36:37]")
    for u in range(2):
        for ee in range(8):
            if u or ee:
                e(f"  s_add_u32 s{sTMP}, s{sTMP}, {8192 if ee else 8192*(32-7)}")
            e(f"  buffer_load_dword v{vVT+8*u+ee}, v{vT3}, {SR(sWQ)}, s{sTMP} offen{wf}")
    for u in range(2):
        e(f"  buffer_load_dwordx4 {R(vQ+4*u)}, v{vT4}, {SR(sX)}, s{sTMP2} offen offset:{64*u}")
    def loadK(buf):
        for jx in range(8):
            T, u = jx // 4, jx % 4
            e(f"  buffer_load_dwordx4 {R(vK[buf]+4*jx)}, v{vKOFF}, {SR(sK)}, s{sOFF0+T} offen offset:{u*64}{kf}")
    def loadV(buf):
        for jx in range(8):
            T, u = jx // 4, jx % 4
            e(f"  buffer_load_dwordx4 {R(vV[buf]+4*jx)}, v{vVOFF}, {SR(sV)}, s{sOFF0+T} offen offset:{u*1024}{kf}")
    e(f"  s_cmp_ge_u32 s{sW}, {NH}")
    e("  s_cbranch_scc1 L_nostream")
    for buf in range(2):
        e(f"  s_mov_b32 s{sOFF0}, s{sNEXT}")
        e(f"  s_add_u32 s{sOFF1}, s{sNEXT}, 4096")
        e(f"  s_add_u32 s{sNEXT}, s{sNEXT}, {NH*8192}")
        loadK(buf); loadV(buf)
    e("  s_waitcnt vmcnt(32)")
    e("  s_branch L_qcomp")
    e("L_nostream:")
    e(f"  s_cmp_lg_u32 s{sW}, 7")
    e("  s_cbranch_scc1 L_noclean")
    e("  s_setprio 3")
    for k in range(4): e(f"  v_mov_b32 v{vK[0]+k}, -1")
    e(f"  s_lshl_b32 s{sTMP}, s2, 10")
    e(f"  s_add_u32 s{sTMP}, s{sTMP}, {WS_H1}")
    e(f"  buffer_store_dwordx4 {R(vK[0])}, v{vVOFF}, {SR(sWS)}, s{sTMP} offen sc1")
    e(f"  s_lshl_b32 s{sTMP}, s2, 11")
    e(f"  s_add_u32 s{sTMP}, s{sTMP}, {WS_H2}")
    e(f"  buffer_store_dwordx4 {R(vK[0])}, v{vVOFF}, {SR(sWS)}, s{sTMP} offen sc1")
    e(f"  buffer_store_dwordx4 {R(vK[0])}, v{vVOFF}, {SR(sWS)}, s{sTMP} offen offset:1024 sc1")
    e(f"  s_lshl_b32 s{sTMP}, s2, 5")
    e(f"  s_add_u32 s{sTMP}, s{sTMP}, {WS_ML}")
    e("  s_mov_b64 exec, 3")
    e(f"  buffer_store_dwordx4 {R(vK[0])}, v{vVOFF}, {SR(sWS)}, s{sTMP} offen sc1")
    e("  s_mov_b64 exec, -1")
    e("  s_waitcnt vmcnt(4)")
    e("  s_branch L_qcomp")
    e("L_noclean:")
    e("  s_waitcnt vmcnt(0)")
    e("L_qcomp:")
    e(f"  s_mov_b32 s{sSELLO}, 0x05040100")
    e(f"  s_mov_b32 s{sSELHI}, 0x07060302")
    e(f"  s_mov_b32 s{sC}, {f32bits(128 ** -0.5 * math.log2(math.e)):#x}")
    E0 = vVT + 16
    for u in range(2):
        for x in range(4):
            a, b = vVT + 8*u + 2*x, vVT + 8*u + 2*x + 1
            e(f"  v_perm_b32 v{E0+8*u+x}, v{b}, v{a}, s{sSELLO}")
            e(f"  v_perm_b32 v{E0+8*u+4+x}, v{b}, v{a}, s{sSELHI}")
    e(f"  v_lshl_add_u32 v{vT0}, v{vG}, 2, v{vJ}")
    e(f"  v_lshlrev_b32 v{vT0}, 5, v{vT0}")
    e(f"  s_lshl_b32 s{sTMP}, s{sW}, 9")
    e(f"  v_add_u32 v{vT0}, s{sTMP}, v{vT0}")
    e(f"  v_mfma_f32_16x16x32_bf16 {R(vS)}, {R(E0)}, {R(vQ)}, 0")
    e(f"  v_mfma_f32_16x16x32_bf16 {R(vS+4)}, {R(E0+4)}, {R(vQ)}, 0")
    e(f"  v_mfma_f32_16x16x32_bf16 {R(vS)}, {R(E0+8)}, {R(vQ+4)}, {R(vS)}")
    e(f"  v_mfma_f32_16x16x32_bf16 {R(vS+4)}, {R(E0+12)}, {R(vQ+4)}, {R(vS+4)}")
    e("  s_mov_b32 exec_lo, 0x000f000f")
    e("  s_mov_b32 exec_hi, 0x000f000f")
    nop(8)
    e(f"  ds_write_b128 v{vT0}, {R(vS)} offset:{L_QP}")
    e(f"  ds_write_b128 v{vT0}, {R(vS+4)} offset:{L_QP+16}")
    e("  s_mov_b64 exec, -1")
    e("  s_waitcnt lgkmcnt(0)")
    e("  s_barrier")
    e(f"  s_cmp_lg_u32 s{sW}, 7")
    e("  s_cbranch_scc1 L_b2")
    e(f"  v_bfe_u32 v{vT1}, v{vLANE}, 2, 2")
    e(f"  v_lshl_add_u32 v{vT0}, v{vT1}, 2, v{vG}")
    e(f"  v_lshlrev_b32 v{vT0}, 5, v{vT0}")
    e(f"  v_and_b32 v{vT2}, 3, v{vLANE}")
    e(f"  v_lshl_add_u32 v{vT0}, v{vT2}, 2, v{vT0}")
    for w in range(8):
        e(f"  ds_read_b32 v{vVT+2*w}, v{vT0} offset:{L_QP+w*512}")
        e(f"  ds_read_b32 v{vVT+2*w+1}, v{vT0} offset:{L_QP+w*512+16}")
    e(f"  v_lshlrev_b32 v{vT2}, 13, v{vG}")
    e(f"  v_lshl_add_u32 v{vT2}, v{vT1}, 4, v{vT2}")
    e(f"  s_lshl_b32 s{sTMP}, s{sP}, 15")
    e(f"  s_lshl_b32 s{sTMP2}, s{sH}, 10")
    e(f"  s_add_u32 s{sTMP}, s{sTMP}, s{sTMP2}")
    e(f"  s_lshl_b32 s{sTMP2}, s{sMU}, 6")
    e(f"  s_add_u32 s{sTMP2}, s{sTMP2}, s{sTMP}")
    e("  s_waitcnt lgkmcnt(0)")
    for half in range(2):
        for st in (1, 2, 4):
            for w in range(0, 8, 2*st):
                e(f"  v_add_f32 v{vVT+2*w+half}, v{vVT+2*w+half}, v{vVT+2*(w+st)+half}")
    e(f"  v_cvt_pk_bf16_f32 v{vP}, v{vVT}, v{vVT+1}")
    nop(2)
    for k in range(1, 4):
        e(f"  v_mov_b32_dpp v{vP+k}, v{vP} quad_perm:[{k},{k},{k},{k}] row_mask:0xf bank_mask:0xf")
    e("  s_mov_b32 exec_lo, 0x11111111")
    e("  s_mov_b32 exec_hi, 0x11111111")
    e(f"  buffer_store_dwordx4 {R(vP)}, v{vT2}, {SR(sWS)}, s{sTMP2} offen sc1")
    e("  s_mov_b64 exec, 1")
    e(f"  v_mov_b32 v{vT3}, 1")
    e(f"  v_mov_b32 v{vT4}, 0")
    e(f"  s_lshl_b32 s{sTMP2}, s{sTEAM}, 4")
    e("  s_waitcnt vmcnt(0)")
    e(f"  buffer_atomic_add v{vT3}, v{vT4}, {SR(sDBG)}, s{sTMP2} offen sc1")
    e(f"  s_mov_b32 s{sPOLL}, 0")
    e("L_qpoll:")
    e(f"  buffer_load_dword v{vT3}, v{vT4}, {SR(sDBG)}, s{sTMP2} offen sc1")
    e(f"  s_add_u32 s{sPOLL}, s{sPOLL}, 1")
    e("  s_waitcnt vmcnt(0)")
    e(f"  v_readfirstlane_b32 s{sOFF0}, v{vT3}")
    e(f"  s_cmp_ge_u32 s{sPOLL}, {POLL_MAX}")
    e("  s_cbranch_scc1 L_qok")
    e(f"  s_cmp_lt_u32 s{sOFF0}, 16")
    e("  s_cbranch_scc1 L_qpoll")
    e("L_qok:")
    e("  s_mov_b64 exec, -1")
    e(f"  s_lshl_b32 s{sTMP2}, s{sB}, 13")
    e(f"  s_add_u32 s{sTMP}, s{sTMP}, s{sTMP2}")
    e(f"  buffer_load_dwordx4 {R(vP)}, v{vVOFF}, {SR(sWS)}, s{sTMP} offen sc1")
    e("  s_waitcnt vmcnt(0)")
    e(f"  ds_write_b128 v{vVOFF}, {R(vP)} offset:{L_QF}")
    e("  s_waitcnt lgkmcnt(0)")
    e("  s_setprio 0")
    e("L_b2:")
    e("  s_barrier")
    stamp(1)
    e(f"  s_cmp_ge_u32 s{sW}, {NH}")
    e("  s_cbranch_scc1 L_roles")
    e(f"  v_and_b32 v{vT0}, 3, v{vLANE}")
    e(f"  v_lshlrev_b32 v{vT0}, 8, v{vT0}")
    e(f"  v_lshl_add_u32 v{vT0}, v{vG}, 4, v{vT0}")
    for u in range(4):
        e(f"  ds_read_b128 {R(vQ+4*u)}, v{vT0} offset:{L_QF+64*u}")
    e(f"  v_mov_b32 v{vM}, {f32bits(-1e30):#x}")
    e(f"  v_mov_b32 v{vL}, 0")
    for k in range(32): e(f"  v_mov_b32 v{vO+k}, 0")
    rest = 128 - 2 * NH
    assert rest % S == 0, (rest, S)
    e(f"  s_cmp_lt_u32 s{sW}, {S}")
    e(f"  s_cselect_b32 s{sISS}, {rest // S}, 0")
    e(f"  s_add_u32 s{sLEFT}, s{sISS}, 2")
    e("  s_waitcnt lgkmcnt(0)")
    e("L_loop:")
    for buf in range(2):
        KB, VB = vK[buf], vV[buf]
        e(f"  s_cmp_gt_i32 s{sISS}, 0")
        e(f"  s_cselect_b32 s{sK+2}, s{sFULL}, 0")
        e(f"  s_cselect_b32 s{sV+2}, s{sFULL}, 0")
        e(f"  s_sub_i32 s{sISS}, s{sISS}, 1")
        e(f"  s_mov_b32 s{sOFF0}, s{sNEXT}")
        e(f"  s_add_u32 s{sOFF1}, s{sNEXT}, 4096")
        e(f"  s_add_u32 s{sNEXT}, s{sNEXT}, {S*8192}")
        e("  s_waitcnt vmcnt(24)")
        for u in range(4):
            for T in range(2):
                c = "0" if u == 0 else R(vS+4*T)
                e(f"  v_mfma_f32_16x16x32_bf16 {R(vS+4*T)}, {R(KB+4*(4*T+u))}, {R(vQ+4*u)}, {c}")
        loadK(buf)
        e("  s_waitcnt vmcnt(24)")
        for d in range(8):
            w_, sel = d >> 1, (sSELHI if d & 1 else sSELLO)
            for x in range(4):
                e(f"  v_perm_b32 v{vVT+4*d+x}, v{VB+4*(2*x+1)+w_}, v{VB+4*(2*x)+w_}, s{sel}")
        loadV(buf)
        e(f"  v_max3_f32 v{vT0}, v{vS}, v{vS+1}, v{vS+2}")
        e(f"  v_max3_f32 v{vT1}, v{vS+3}, v{vS+4}, v{vS+5}")
        e(f"  v_max3_f32 v{vT0}, v{vT0}, v{vS+6}, v{vS+7}")
        e(f"  v_max3_f32 v{vT0}, v{vT0}, v{vT1}, v{vM}")
        e(f"  v_mov_b32 v{vT1}, v{vT0}")
        nop(2)
        e(f"  v_permlane16_swap_b32 v{vT0}, v{vT1}")
        nop(1)
        e(f"  v_max_f32 v{vT0}, v{vT0}, v{vT1}")
        e(f"  v_mov_b32 v{vT1}, v{vT0}")
        nop(2)
        e(f"  v_permlane32_swap_b32 v{vT0}, v{vT1}")
        nop(1)
        e(f"  v_max_f32 v{vT0}, v{vT0}, v{vT1}")
        e(f"  v_cmp_neq_f32 vcc, v{vT0}, v{vM}")
        e(f"  v_sub_f32 v{vT2}, v{vM}, v{vT0}")
        e(f"  v_mul_f32 v{vT2}, s{sC}, v{vT2}")
        e(f"  v_exp_f32 v{vT2}, v{vT2}")
        e(f"  v_mov_b32 v{vM}, v{vT0}")
        e(f"  v_mul_f32 v{vT3}, s{sC}, v{vT0}")
        for k in range(8):
            e(f"  v_fma_f32 v{vS+k}, v{vS+k}, s{sC}, -v{vT3}")
        for k in range(8):
            e(f"  v_exp_f32 v{vS+k}, v{vS+k}")
        e(f"  v_mul_f32 v{vL}, v{vL}, v{vT2}")
        for x in range(4):
            e(f"  v_cvt_pk_bf16_f32 v{vP+x}, v{vS+2*x}, v{vS+2*x+1}")
        e(f"  v_add_f32 v{vT0}, v{vS}, v{vS+1}")
        e(f"  v_add_f32 v{vT1}, v{vS+2}, v{vS+3}")
        e(f"  v_add_f32 v{vT3}, v{vS+4}, v{vS+5}")
        e(f"  v_add_f32 v{vT4}, v{vS+6}, v{vS+7}")
        e(f"  v_add_f32 v{vT0}, v{vT0}, v{vT1}")
        e(f"  v_add_f32 v{vT3}, v{vT3}, v{vT4}")
        e(f"  v_add_f32 v{vL}, v{vL}, v{vT0}")
        e(f"  v_add_f32 v{vL}, v{vL}, v{vT3}")
        e(f"  s_cbranch_vccz L_nores{buf}")
        for k in range(32):
            e(f"  v_mul_f32 v{vO+k}, v{vO+k}, v{vT2}")
        nop(2)
        e(f"L_nores{buf}:")
        for d in range(8):
            e(f"  v_mfma_f32_16x16x32_bf16 {R(vO+4*d)}, {R(vVT+4*d)}, {R(vP)}, {R(vO+4*d)}")
        e(f"  s_sub_u32 s{sLEFT}, s{sLEFT}, 1")
        e(f"  s_cmp_eq_u32 s{sLEFT}, 0")
        if buf == 0:
            e("  s_cbranch_scc1 L_done")
        else:
            e("  s_cbranch_scc0 L_loop")
    e("L_done:")
    e(f"  v_mov_b32 v{vT1}, v{vL}")
    nop(2)
    e(f"  v_permlane16_swap_b32 v{vL}, v{vT1}")
    nop(1)
    e(f"  v_add_f32 v{vL}, v{vL}, v{vT1}")
    e(f"  v_mov_b32 v{vT1}, v{vL}")
    nop(2)
    e(f"  v_permlane32_swap_b32 v{vL}, v{vT1}")
    nop(1)
    e(f"  v_add_f32 v{vL}, v{vL}, v{vT1}")
    e(f"  v_mul_u32_u24 v{vT0}, {HEAD_STRIDE}, v{vJ}")
    e(f"  v_lshl_add_u32 v{vT0}, v{vG}, 7, v{vT0}")
    e(f"  s_mul_i32 s{sTMP}, s{sW}, {SLAB_STRIDE}")
    e(f"  v_add_u32 v{vT0}, s{sTMP}, v{vT0}")
    e(f"  s_lshl_b32 s{sTMP}, s{sW}, 3")
    e(f"  v_lshlrev_b32 v{vT1}, 6, v{vJ}")
    e(f"  v_add_u32 v{vT1}, s{sTMP}, v{vT1}")
    e("  s_mov_b32 exec_lo, 0x000f000f")
    e("  s_mov_b32 exec_hi, 0x000f000f")
    for d in range(8):
        e(f"  ds_write_b128 v{vT0}, {R(vO+4*d)} offset:{L_SLAB+16*d}")
    e("  s_mov_b64 exec, 15")
    e(f"  ds_write_b64 v{vT1}, {R(vM,2)} offset:{L_ML}")
    e("  s_mov_b64 exec, -1")
    e("L_roles:")
    e(f"  s_cmp_lt_u32 s{sW}, 4")
    e("  s_cbranch_scc1 L_b3")
    e("  s_waitcnt vmcnt(0)")
    e(f"  v_lshlrev_b32 v{vT0}, 2, v{vJ}")
    e(f"  v_lshl_add_u32 v{vT0}, v{vG}, 11, v{vT0}")
    e(f"  s_lshl_b32 s{sTMP}, s{sH}, 2")
    e(f"  s_add_u32 s{sTMP}, s{sTMP}, s{sB}")
    e(f"  s_lshl_b32 s{sTMP}, s{sTMP}, 17")
    e(f"  s_lshl_b32 s{sTMP2}, s{sS}, 8")
    e(f"  s_add_u32 s{sTMP}, s{sTMP}, s{sTMP2}")
    e(f"  s_sub_u32 s{sTMP2}, s{sW}, 4")
    e(f"  s_lshl_b32 s{sTMP2}, s{sTMP2}, 6")
    e(f"  s_add_u32 s{sTMP}, s{sTMP}, s{sTMP2}")
    WR, WE = vK[0], vV[0]
    for u in range(4):
        for q in range(4):
            if u or q: e(f"  s_add_u32 s{sTMP}, s{sTMP}, 8192")
            e(f"  buffer_load_dword v{WR+8*u+q}, v{vT0}, {SR(sWO)}, s{sTMP} offen{wf}")
            e(f"  buffer_load_dword v{WR+8*u+4+q}, v{vT0}, {SR(sWO)}, s{sTMP} offen offset:1024{wf}")
    e("  s_waitcnt vmcnt(0)")
    for u in range(4):
        for x in range(4):
            a, b = WR + 8*u + 2*x, WR + 8*u + 2*x + 1
            e(f"  v_perm_b32 v{WE+8*u+x}, v{b}, v{a}, s{sSELLO}")
            e(f"  v_perm_b32 v{WE+8*u+4+x}, v{b}, v{a}, s{sSELHI}")
    e(f"  s_cmp_lg_u32 s{sW}, 7")
    e("  s_cbranch_scc1 L_b3")
    e(f"  s_mov_b32 s{sPOLL}, 0")
    e("  s_mov_b64 exec, 0xffff")
    e("L_ipoll:")
    e(f"  buffer_load_dword v{vT3}, v{vVOFF}, {SR(sDBG)}, 0 offen sc1")
    e(f"  s_add_u32 s{sPOLL}, s{sPOLL}, 1")
    e("  s_waitcnt vmcnt(0)")
    e(f"  v_cmp_gt_u32 vcc, 16, v{vT3}")
    e(f"  s_cmp_ge_u32 s{sPOLL}, {POLL_MAX}")
    e("  s_cbranch_scc1 L_iok")
    e("  s_cbranch_vccz L_iok")
    e("  s_sleep 8")
    e("  s_branch L_ipoll")
    e("L_iok:")
    e("  s_mov_b64 exec, -1")
    e("L_b3:")
    e("  s_waitcnt lgkmcnt(0)")
    e("  s_barrier")
    e(f"  s_cmp_ge_u32 s{sW}, 4")
    e("  s_cbranch_scc1 L_tail")
    e(f"  s_cmp_eq_u32 s{sW}, 3")
    e("  s_cbranch_scc1 L_comb")
    e(f"  s_cmp_eq_u32 s{sW}, 2")
    e("  s_cbranch_scc1 L_red")
    if stamps:
        e(f"  s_cmp_lg_u32 s{sW}, 0")
        e("  s_cbranch_scc1 L_end")
        stamp(2)
        e(f"  s_getreg_b32 s{sST+6}, hwreg(HW_REG_XCC_ID)")
        e(f"  s_mov_b32 s{sST+7}, 0")
        stamp_store([(0, 0), (1, 1), (2, 2), (7, 3)])
    e("  s_endpgm")
    e("L_comb:")
    A = vK[0]
    ML = vVT
    e(f"  v_lshlrev_b32 v{vT0}, 5, v{vLANE}")
    e(f"  v_lshl_add_u32 v{vT0}, v{vG}, 4, v{vT0}")
    e(f"  v_lshlrev_b32 v{vT1}, 6, v{vG}")
    for k in range(4):
        e(f"  ds_read_b128 {R(ML+4*k)}, v{vT1} offset:{L_ML+16*k}")
    for w in range(NH):
        e(f"  ds_read_b128 {R(A+8*w)}, v{vT0} offset:{L_SLAB+w*SLAB_STRIDE}")
        e(f"  ds_read_b128 {R(A+8*w+4)}, v{vT0} offset:{L_SLAB+w*SLAB_STRIDE+16}")
    e(f"  v_lshlrev_b32 v{vT4}, 12, v{vG}")
    e(f"  v_lshl_add_u32 v{vT4}, v{vJ}, 4, v{vT4}")
    e(f"  v_lshlrev_b32 v{vT5}, 7, v{vG}")
    e(f"  s_lshl_b32 s{sTMP}, s{sS}, 2")
    e(f"  s_add_u32 s{sTMP}, s{sTMP}, s{sB}")
    e(f"  s_lshl_b32 s{sOFF0}, s{sTMP}, 8")
    e(f"  s_lshl_b32 s{sTMP2}, s{sTEAM}, 14")
    e(f"  s_add_u32 s{sOFF0}, s{sOFF0}, s{sTMP2}")
    e(f"  s_add_u32 s{sOFF0}, s{sOFF0}, {WS_H1}")
    e(f"  s_lshl_b32 s{sOFF1}, s{sTMP}, 3")
    e(f"  s_lshl_b32 s{sTMP2}, s{sTEAM}, 9")
    e(f"  s_add_u32 s{sOFF1}, s{sOFF1}, s{sTMP2}")
    e(f"  s_add_u32 s{sOFF1}, s{sOFF1}, {WS_ML}")
    e(f"  s_waitcnt lgkmcnt({min(15, 2*NH)})")
    e(f"  v_mov_b32 v{vM}, v{ML}")
    for w in range(1, NH):
        e(f"  v_max_f32 v{vM}, v{vM}, v{ML+2*w}")
    for w in range(NH):
        e(f"  v_sub_f32 v{ML+2*w}, v{ML+2*w}, v{vM}")
    for w in range(NH):
        e(f"  v_mul_f32 v{ML+2*w}, s{sC}, v{ML+2*w}")
    for w in range(NH):
        e(f"  v_exp_f32 v{ML+2*w}, v{ML+2*w}")
    e(f"  v_mul_f32 v{vM}, s{sC}, v{vM}")
    e(f"  v_mul_f32 v{vL}, v{ML}, v{ML+1}")
    for w in range(1, NH):
        e(f"  v_fmac_f32 v{vL}, v{ML+2*w}, v{ML+2*w+1}")
    e(f"  v_rcp_f32 v{vT2}, v{vL}")
    e("  s_waitcnt lgkmcnt(0)")
    for k in range(8):
        e(f"  v_mul_f32 v{A+k}, v{A+k}, v{ML}")
    for w in range(1, NH):
        for k in range(8):
            e(f"  v_fmac_f32 v{A+k}, v{A+8*w+k}, v{ML+2*w}")
    for k in range(8):
        e(f"  v_mul_f32 v{A+k}, v{A+k}, v{vT2}")
    for x in range(4):
        e(f"  v_cvt_pk_bf16_f32 v{vP+x}, v{A+2*x}, v{A+2*x+1}")
    for x in range(4):
        e(f"  v_min_u32 v{vP+x}, -2, v{vP+x}")
    e(f"  v_min_u32 v{vM}, -2, v{vM}")
    e(f"  v_min_u32 v{vL}, -2, v{vL}")
    e(f"  buffer_store_dwordx4 {R(vP)}, v{vT4}, {SR(sWS)}, s{sOFF0} offen sc1")
    e("  s_mov_b32 exec_lo, 0x00010001")
    e("  s_mov_b32 exec_hi, 0x00010001")
    e(f"  buffer_store_dwordx2 {R(vM,2)}, v{vT5}, {SR(sWS)}, s{sOFF1} offen sc1")
    stamp(2)
    stamp_store([(3, 2)])
    e("  s_endpgm")
    e("L_tail:")
    Bq = vK[1]; MLr = vK[1] + 16
    e(f"  v_lshlrev_b32 v{vT0}, 8, v{vJ}")
    e(f"  v_lshl_add_u32 v{vT0}, v{vG}, 4, v{vT0}")
    e(f"  v_lshlrev_b32 v{vT1}, 3, v{vJ}")
    e(f"  s_lshl_b32 s{sTMP}, s{sTEAM}, 2")
    e(f"  s_add_u32 s{sTMP}, s{sTMP}, s{sB}")
    e(f"  s_lshl_b32 s{sOFF0}, s{sTMP}, 12")
    e(f"  s_add_u32 s{sOFF0}, s{sOFF0}, {WS_H1}")
    e(f"  s_lshl_b32 s{sOFF1}, s{sTMP}, 7")
    e(f"  s_add_u32 s{sOFF1}, s{sOFF1}, {WS_ML}")
    e(f"  s_mov_b32 s{sPOLL}, 0")
    e("L_tpoll:")
    for u in range(4):
        e(f"  buffer_load_dwordx4 {R(Bq+4*u)}, v{vT0}, {SR(sWS)}, s{sOFF0} offen offset:{64*u} sc1")
    e(f"  buffer_load_dwordx2 {R(MLr,2)}, v{vT1}, {SR(sWS)}, s{sOFF1} offen sc1")
    e(f"  s_add_u32 s{sPOLL}, s{sPOLL}, 1")
    e("  s_waitcnt vmcnt(0)")
    e(f"  v_max3_u32 v{vT2}, v{Bq}, v{Bq+1}, v{Bq+2}")
    e(f"  v_max3_u32 v{vT3}, v{Bq+3}, v{Bq+4}, v{Bq+5}")
    e(f"  v_max3_u32 v{vT4}, v{Bq+6}, v{Bq+7}, v{Bq+8}")
    e(f"  v_max3_u32 v{vT2}, v{vT2}, v{Bq+9}, v{Bq+10}")
    e(f"  v_max3_u32 v{vT3}, v{vT3}, v{Bq+11}, v{Bq+12}")
    e(f"  v_max3_u32 v{vT4}, v{vT4}, v{Bq+13}, v{Bq+14}")
    e(f"  v_max3_u32 v{vT2}, v{vT2}, v{Bq+15}, v{MLr}")
    e(f"  v_max3_u32 v{vT3}, v{vT3}, v{vT4}, v{MLr+1}")
    e(f"  v_max_u32 v{vT2}, v{vT2}, v{vT3}")
    e(f"  v_cmp_eq_u32 vcc, -1, v{vT2}")
    e(f"  s_cmp_ge_u32 s{sPOLL}, {POLL_MAX}")
    e("  s_cbranch_scc1 L_tok")
    e("  s_cbranch_vccz L_tok")
    e("  s_mov_b64 exec, vcc")
    e("  s_sleep 2")
    e("  s_branch L_tpoll")
    e("L_tok:")
    e("  s_mov_b64 exec, -1")
    stamp(2)
    for u in range(4):
        for par in range(2):
            c = "0" if u == 0 else R(vS+4*par)
            e(f"  v_mfma_f32_16x16x32_bf16 {R(vS+4*par)}, {R(WE+8*u+4*par)}, {R(Bq+4*u)}, {c}")
    dpp = "row_mask:0xf bank_mask:0xf"
    e(f"  v_max_f32_dpp v{vT2}, v{MLr}, v{MLr} row_ror:4 {dpp}")
    nop(2)
    e(f"  v_max_f32_dpp v{vT2}, v{vT2}, v{vT2} row_ror:8 {dpp}")
    e(f"  v_sub_f32 v{vT2}, v{MLr}, v{vT2}")
    e(f"  v_exp_f32 v{vT2}, v{vT2}")
    nop(1)
    e(f"  v_mul_f32 v{vT2}, v{vT2}, v{MLr+1}")
    nop(2)
    e(f"  v_add_f32_dpp v{vT3}, v{vT2}, v{vT2} row_ror:4 {dpp}")
    nop(2)
    e(f"  v_add_f32_dpp v{vT3}, v{vT3}, v{vT3} row_ror:8 {dpp}")
    e(f"  v_rcp_f32 v{vT3}, v{vT3}")
    e(f"  v_bfe_u32 v{vT4}, v{vLANE}, 1, 1")
    e(f"  v_lshl_add_u32 v{vT4}, v{vG}, 1, v{vT4}")
    e(f"  v_lshlrev_b32 v{vT4}, 11, v{vT4}")
    e(f"  v_and_b32 v{vT5}, 1, v{vLANE}")
    e(f"  v_lshl_add_u32 v{vT4}, v{vT5}, 5, v{vT4}")
    e(f"  v_mul_f32 v{vT2}, v{vT2}, v{vT3}")
    e(f"  s_lshl_b32 s{sTMP}, s{sP}, 2")
    e(f"  s_add_u32 s{sTMP}, s{sTMP}, s{sS}")
    e(f"  s_lshl_b32 s{sTMP}, s{sTMP}, 16")
    e(f"  s_sub_u32 s{sTMP2}, s{sW}, 4")
    e(f"  s_lshl_b32 s{sTMP2}, s{sTMP2}, 14")
    e(f"  s_add_u32 s{sTMP}, s{sTMP}, s{sTMP2}")
    e(f"  s_lshl_b32 s{sTMP2}, s{sH}, 2")
    e(f"  s_add_u32 s{sTMP2}, s{sTMP2}, s{sB}")
    e(f"  s_lshl_b32 s{sTMP2}, s{sTMP2}, 6")
    e(f"  s_add_u32 s{sTMP}, s{sTMP}, s{sTMP2}")
    e(f"  s_add_u32 s{sTMP}, s{sTMP}, {WS_H2}")
    for k in range(8):
        e(f"  v_mul_f32 v{vS+k}, v{vS+k}, v{vT2}")
    for k in range(8):
        e(f"  v_add_f32_dpp v{vS+k}, v{vS+k}, v{vS+k} row_ror:4 {dpp}")
    for k in range(8):
        e(f"  v_add_f32_dpp v{vS+k}, v{vS+k}, v{vS+k} row_ror:8 {dpp}")
    for k in range(8):
        e(f"  v_min_u32 v{vS+k}, -2, v{vS+k}")
    e("  s_mov_b32 exec_lo, 0x000f000f")
    e("  s_mov_b32 exec_hi, 0x000f000f")
    e(f"  buffer_store_dwordx4 {R(vS)}, v{vT4}, {SR(sWS)}, s{sTMP} offen sc1")
    e(f"  buffer_store_dwordx4 {R(vS+4)}, v{vT4}, {SR(sWS)}, s{sTMP} offen offset:16 sc1")
    if stamps:
        stamp(3)
        e(f"  s_cmp_lg_u32 s{sW}, 4")
        e("  s_cbranch_scc1 L_end")
        stamp_store([(4, 2), (5, 3)])
    e("  s_endpgm")
    e("L_red:")
    X = vK[0]
    e(f"  s_lshl_b32 s{sTMP2}, s{sH}, 2")
    e(f"  s_add_u32 s{sTMP2}, s{sTMP2}, s{sB}")
    e(f"  s_lshl_b32 s{sTMP}, s{sP}, 2")
    e(f"  s_add_u32 s{sTMP}, s{sTMP}, s{sS}")
    e(f"  s_lshl_b32 s{sOFF0}, s{sTMP}, 16")
    e(f"  s_lshl_b32 s{sOFF1}, s{sTMP2}, 11")
    e(f"  s_add_u32 s{sOFF0}, s{sOFF0}, s{sOFF1}")
    e(f"  s_add_u32 s{sOFF0}, s{sOFF0}, {WS_H2}")
    e(f"  s_lshl_b32 s{sOFF1}, s{sTMP}, 8")
    e(f"  s_and_b32 s{sTMP}, s{sTMP2}, 1")
    e(f"  s_lshl_b32 s{sTMP}, s{sTMP}, 12")
    e(f"  s_add_u32 s{sOFF1}, s{sOFF1}, s{sTMP}")
    e(f"  s_lshr_b32 s{sTMP}, s{sTMP2}, 1")
    e(f"  s_lshl_b32 s{sTMP}, s{sTMP}, 4")
    e(f"  s_add_u32 s{sOFF1}, s{sOFF1}, s{sTMP}")
    e(f"  v_lshlrev_b32 v{vT4}, 10, v{vLANE}")
    e(f"  s_mov_b32 s{sPOLL}, 0")
    e("L_rpoll:")
    e(f"  buffer_load_dwordx4 {R(X)}, v{vVOFF}, {SR(sWS)}, s{sOFF0} offen sc1")
    e(f"  buffer_load_dwordx4 {R(X+4)}, v{vVOFF}, {SR(sWS)}, s{sOFF0} offen offset:1024 sc1")
    e(f"  s_add_u32 s{sPOLL}, s{sPOLL}, 1")
    e("  s_waitcnt vmcnt(0)")
    e(f"  v_max3_u32 v{vT2}, v{X}, v{X+1}, v{X+2}")
    e(f"  v_max3_u32 v{vT3}, v{X+3}, v{X+4}, v{X+5}")
    e(f"  v_max3_u32 v{vT2}, v{vT2}, v{X+6}, v{X+7}")
    e(f"  v_max_u32 v{vT2}, v{vT2}, v{vT3}")
    e(f"  v_cmp_eq_u32 vcc, -1, v{vT2}")
    e(f"  s_cmp_ge_u32 s{sPOLL}, {POLL_MAX}")
    e("  s_cbranch_scc1 L_rok")
    e("  s_cbranch_vccz L_rok")
    e("  s_mov_b64 exec, vcc")
    e("  s_sleep 2")
    e("  s_branch L_rpoll")
    e("L_rok:")
    e("  s_mov_b64 exec, -1")
    for k in range(4):
        e(f"  v_add_f32 v{X+k}, v{X+k}, v{X+4+k}")
    for k in range(4):
        e(f"  v_add_f32_dpp v{X+k}, v{X+k}, v{X+k} row_ror:4 {dpp}")
    for k in range(4):
        e(f"  v_add_f32_dpp v{X+k}, v{X+k}, v{X+k} row_ror:8 {dpp}")
    for op in ("v_permlane16_swap_b32", "v_permlane32_swap_b32"):
        for k in range(4):
            e(f"  v_mov_b32 v{X+4+k}, v{X+k}")
        nop(2)
        for k in range(4):
            e(f"  {op} v{X+k}, v{X+4+k}")
        nop(1)
        for k in range(4):
            e(f"  v_add_f32 v{X+k}, v{X+k}, v{X+4+k}")
    nop(2)
    for k in range(4):
        e(f"  v_mov_b32_dpp v{X+4+k}, v{X+k} quad_perm:[1,1,3,3] {dpp}")
    for k in range(4):
        e(f"  v_cvt_pk_bf16_f32 v{vP+k}, v{X+k}, v{X+4+k}")
    e("  s_mov_b64 exec, 5")
    e(f"  buffer_store_dwordx4 {R(vP)}, v{vT4}, {SR(sOUT)}, s{sOFF1} offen")
    if stamps:
        e("  s_waitcnt vmcnt(0)")
        stamp(2)
        stamp_store([(6, 2)])
    e("L_end:")
    e("  s_endpgm")
    e('.section .rodata,"a"')
    e(".p2align 6")
    e(f".amdhsa_kernel {NAME}_kernel")
    e(f"  .amdhsa_next_free_vgpr {NV}")
    e("  .amdhsa_next_free_sgpr 96")
    e(f"  .amdhsa_accum_offset {(NV+3)//4*4}")
    e("  .amdhsa_group_segment_fixed_size 0")
    e("  .amdhsa_kernarg_size 104")
    e("  .amdhsa_user_sgpr_count 2")
    e("  .amdhsa_user_sgpr_kernarg_segment_ptr 1")
    e("  .amdhsa_system_sgpr_workgroup_id_x 1")
    e(".end_amdhsa_kernel")
    return "\n".join(L) + "\n"

if __name__ == "__main__":
    os.makedirs("exp", exist_ok=True)
    open("k1.s", "w").write(gen())
    open("k1_st.s", "w").write(gen(stamps=True))
    open(f"cdna_kernels/{NAME}.s", "w").write(gen())
```

```python
import sys, math, os, struct
NAME = "concat_heads__gqa_block_cached__gqa_block_cached__decode"
WS_BYTES = 553656320
STAMP_OFF = WS_BYTES - (1 << 20)
WS_Q = 0
WS_E = 512 << 10
WS_H1 = 1 << 20
WS_ML = WS_H1 + (256 << 10)
WS_H2 = WS_H1 + (512 << 10)
WS_USED = 2 << 20
L_FLAG = 0
F_LAND, F_QCNT, F_QRDY, F_WDONE, F_FREE = 0, 4, 8, 12, 16
L_ML = 64
L_QF = 512
L_QP = 1536
L_SLAB = 3584
SLAB_STRIDE = 2176
HEAD_STRIDE = 528
L_RING = 12288

def f32bits(x):
    return struct.unpack("<I", struct.pack("<f", x))[0]

HEADER = """; Fused dual GQA decode (q-proj -> split-K flash decode -> out-proj), single persistent launch.
;             4-7 weight waves (q-proj slice, out-proj slice)"""

def gen(stamps=False, kvflag="nt", wflag="nt", POLL_MAX=200000, R=9, infl=24, grp=4,
        bk=((16, 48), (4, 12), (0, 1)), rbk=((32, 32), (16, 8), (0, 1)), redw=4, nowo=False, nowq=False, noclean=False):
    C = 2
    NT = 128
    LDS_BYTES = L_RING + R * 16384
    assert LDS_BYTES <= 163840
    L = []
    e = L.append
    kf = (" " + kvflag) if kvflag else ""
    wf = (" " + wflag) if wflag else ""
    dpp = "row_mask:0xf bank_mask:0xf"
    def Rg(i, n=4): return f"v[{i}:{i+n-1}]"
    def nop(n):
        while n > 0:
            k = min(n, 16); e(f"  s_nop {k-1}"); n -= k
    vLANE, vKOFF, vVOFF, vM, vL = 1, 2, 3, 4, 5
    vT0, vT1, vT2, vT3, vT4, vT5 = 6, 7, 8, 9, 10, 11
    vP = 12; vS = 16; vQ = 24; vO = 40; vVT = 72; vK = 104; vV = 136
    vG, vJ, vZ, vONE, vA = 168, 169, 170, 171, 172
    NV = 176
    sW, sH, sMU, sP, sB, sS = 3, 4, 5, 6, 7, 8
    sTEAM, sTMP, sTMP2, sOFF0, sOFF1, sNEXT, sT, sSLOT = 9, 10, 11, 12, 13, 14, 15, 42
    sFIDX = 43
    sRO0, sRO1 = 15, 43
    sK, sV, sWQ, sWO, sX, sWS, sDBG, sOUT = 44, 48, 52, 56, 60, 64, 68, 72
    sC, sSELLO, sSELHI, sU, sPOLL, sTAG, sFIRST = 76, 77, 78, 79, 80, 81, 82
    sST = 84
    def SR(i): return f"s[{i}:{i+3}]"
    def stamp(i):
        if stamps: e(f"  s_memrealtime s[{sST+2*i}:{sST+2*i+1}]")
    def fin():
        e("  s_branch L_fin" if stamps else "  s_endpgm")
    def lds_wait(label, addr_v, off, want, sleep=1, pre=None):
        e(f"  s_mov_b32 s{sPOLL}, 0")
        e(f"{label}:")
        e(f"  ds_read_b32 v{vT5}, v{addr_v} offset:{off}")
        e(f"  s_add_u32 s{sPOLL}, s{sPOLL}, 1")
        e("  s_waitcnt lgkmcnt(0)")
        e(f"  v_readfirstlane_b32 s{sTMP}, v{vT5}")
        e(f"  s_cmp_ge_u32 s{sPOLL}, {POLL_MAX}")
        e(f"  s_cbranch_scc1 {label}_ok")
        e(f"  s_cmp_ge_i32 s{sTMP}, {want}")
        e(f"  s_cbranch_scc1 {label}_ok")
        if pre: pre()
        if sleep: e(f"  s_sleep {sleep}")
        e(f"  s_branch {label}")
        e(f"{label}_ok:")

    def backoff(label, loop, bk):
        e(f"  s_bcnt1_i32_b64 s{sTMP}, vcc")
        e("  s_mov_b64 exec, vcc")
        for k, (thr, sl) in enumerate(bk):
            if thr > 0:
                e(f"  s_cmp_le_u32 s{sTMP}, {thr}")
                e(f"  s_cbranch_scc1 {label}_{k}")
            if sl: e(f"  s_sleep {sl}")
            e(f"  s_branch {loop}")
            if thr > 0: e(f"{label}_{k}:")

    e(HEADER)
    e(f"; @launch grid=(256,1,1) block=(512,1,1) lds={LDS_BYTES}")
    e('.amdgcn_target "amdgcn-amd-amdhsa--gfx950"')
    e(".text")
    e(f".globl {NAME}_kernel")
    e(".p2align 8")
    e(f".type {NAME}_kernel,@function")
    e(f"{NAME}_kernel:")
    e("  s_cmp_ge_u32 s2, 256")
    e("  s_cbranch_scc1 L_end")
    if stamps:
        for k in range(2, 16): e(f"  s_mov_b32 s{sST+k}, 0")
    stamp(0)
    e("  s_load_dwordx16 s[16:31], s[0:1], 0")
    e("  s_load_dwordx8 s[32:39], s[0:1], 64")
    e("  s_load_dwordx2 s[40:41], s[0:1], 96")
    e(f"  v_lshrrev_b32 v{vT0}, 6, v0")
    e(f"  v_and_b32 v{vLANE}, 63, v0")
    e(f"  s_and_b32 s{sH}, s2, 7")
    e(f"  v_readfirstlane_b32 s{sW}, v{vT0}")
    e(f"  s_lshr_b32 s{sMU}, s2, 3")
    e(f"  s_lshr_b32 s{sP}, s{sMU}, 4")
    e(f"  s_and_b32 s{sMU}, s{sMU}, 15")
    e(f"  s_lshr_b32 s{sB}, s{sMU}, 2")
    e(f"  s_and_b32 s{sS}, s{sMU}, 3")
    e(f"  s_lshl_b32 s{sTEAM}, s{sP}, 3")
    e(f"  s_add_u32 s{sTEAM}, s{sTEAM}, s{sH}")
    e(f"  v_lshrrev_b32 v{vG}, 4, v{vLANE}")
    e(f"  v_and_b32 v{vJ}, 15, v{vLANE}")
    e(f"  v_lshlrev_b32 v{vVOFF}, 4, v{vLANE}")
    e(f"  v_and_b32 v{vT1}, 3, v{vLANE}")
    e(f"  v_bfe_u32 v{vT2}, v{vLANE}, 2, 2")
    e(f"  v_mov_b32 v{vZ}, 0")
    e(f"  v_mov_b32 v{vONE}, 1")
    e(f"  s_sub_u32 s{sU}, s{sW}, 4")
    for srd, nb in ((sK, 0x8000000), (sV, 0x8000000), (sWQ, 0 if nowq else 0x400000), (sWO, 0 if nowo else 0x400000), (sX, 4096), (sWS, WS_USED), (sDBG, 256), (sOUT, 8192)):
        e(f"  s_mov_b32 s{srd+2}, {nb}")
        e(f"  s_mov_b32 s{srd+3}, 0x20000")
    e(f"  s_mov_b32 s{sSELLO}, 0x05040100")
    e(f"  s_mov_b32 s{sSELHI}, 0x07060302")
    e(f"  s_mov_b32 s{sC}, {f32bits(128 ** -0.5 * math.log2(math.e)):#x}")
    e(f"  s_cmp_eq_u32 s{sP}, 0")
    e("  s_waitcnt lgkmcnt(0)")
    e(f"  s_cselect_b64 s[{sWQ}:{sWQ+1}], s[22:23], s[32:33]")
    e(f"  s_cselect_b64 s[{sX}:{sX+1}], s[16:17], s[26:27]")
    e(f"  s_cselect_b64 s[{sK}:{sK+1}], s[18:19], s[28:29]")
    e(f"  s_cselect_b64 s[{sV}:{sV+1}], s[20:21], s[30:31]")
    e(f"  s_cselect_b64 s[{sWO}:{sWO+1}], s[24:25], s[34:35]")
    e(f"  s_mov_b64 s[{sWS}:{sWS+1}], s[40:41]")
    e(f"  s_mov_b64 s[{sDBG}:{sDBG+1}], s[38:39]")
    e(f"  s_mov_b64 s[{sOUT}:{sOUT+1}], s[36:37]")
    e(f"  s_cmp_ge_u32 s{sW}, 4")
    e("  s_cbranch_scc1 L_wwave")
    e(f"  s_cmp_eq_u32 s{sW}, 0")
    e("  s_cbranch_scc1 L_loader")
    e(f"  s_cmp_eq_u32 s{sW}, 3")
    e("  s_cbranch_scc1 L_helper")
    e("  s_branch L_cons")

    e("L_wwave:")
    e("  s_setprio 2")
    WST = L_RING + (R - 2) * 16384
    e(f"  v_lshrrev_b32 v{vT0}, 2, v{vLANE}")
    e(f"  v_lshlrev_b32 v{vT3}, 4, v{vT1}")
    e(f"  v_lshl_add_u32 v{vT4}, v{vT0}, 13, v{vT3}")
    e(f"  v_lshl_add_u32 v{vKOFF}, v{vT0}, 10, v{vT3}")
    e(f"  s_lshl_b32 s{sTMP}, s{sU}, 20")
    e(f"  s_lshl_b32 s{sTMP2}, s{sH}, 10")
    e(f"  s_add_u32 s{sTMP}, s{sTMP}, s{sTMP2}")
    e(f"  s_lshl_b32 s{sTMP2}, s{sMU}, 6")
    e(f"  s_add_u32 s{sTMP}, s{sTMP}, s{sTMP2}")
    e(f"  s_lshl_b32 s{sSLOT}, s{sU}, 13")
    e(f"  s_add_u32 s{sSLOT}, s{sSLOT}, {WST}")
    for n in range(8):
        e(f"  s_add_u32 m0, s{sSLOT}, {n*1024}")
        if n: e(f"  s_add_u32 s{sTMP}, s{sTMP}, {16*8192}")
        else: e("  s_nop 0")
        e(f"  buffer_load_dwordx4 v{vT4}, {SR(sWQ)}, s{sTMP} offen{wf} lds")
    e(f"  v_lshlrev_b32 v{vT0}, 10, v{vT1}")
    e(f"  v_lshl_add_u32 v{vT0}, v{vT2}, 6, v{vT0}")
    e(f"  v_lshl_add_u32 v{vT0}, v{vG}, 4, v{vT0}")
    e(f"  s_lshl_b32 s{sTMP2}, s{sU}, 8")
    e(f"  buffer_load_dwordx4 {Rg(vQ)}, v{vT0}, {SR(sX)}, s{sTMP2} offen")
    e("  s_barrier")
    e(f"  v_lshlrev_b32 v{vT3}, 2, v{vJ}")
    e(f"  v_add_u32 v{vT3}, s{sSLOT}, v{vT3}")
    e(f"  v_lshl_add_u32 v{vT0}, v{vG}, 9, v{vT3}")
    e(f"  v_lshl_add_u32 v{vA}, v{vG}, 7, v{vT3}")
    e(f"  v_lshl_add_u32 v{vT4}, v{vG}, 2, v{vJ}")
    e(f"  v_lshlrev_b32 v{vT4}, 5, v{vT4}")
    e(f"  s_lshl_b32 s{sTMP}, s{sU}, 9")
    e(f"  v_add_u32 v{vT4}, s{sTMP}, v{vT4}")
    e(f"  s_lshl_b32 s{sOFF0}, s{sH}, 2")
    e(f"  s_add_u32 s{sOFF0}, s{sOFF0}, s{sB}")
    e(f"  s_lshl_b32 s{sOFF0}, s{sOFF0}, 17")
    e(f"  s_lshl_b32 s{sTMP2}, s{sS}, 8")
    e(f"  s_add_u32 s{sOFF0}, s{sOFF0}, s{sTMP2}")
    e(f"  s_lshl_b32 s{sTMP2}, s{sU}, 6")
    e(f"  s_add_u32 s{sOFF0}, s{sOFF0}, s{sTMP2}")
    e("  s_waitcnt vmcnt(0)")
    stamp(1)
    WR, WE = vK, vV
    for u in range(4):
        for q in range(8):
            e(f"  ds_read_b32 v{WR+8*u+q}, v{vT0} offset:{u*2048+q*64}")
    for u in range(1, 4):
        for k in range(4):
            e(f"  v_mov_b32_dpp v{vQ+4*u+k}, v{vQ+k} row_ror:{16-4*u} {dpp}")
    def perms():
        for u in range(4):
            for x in range(4):
                a, b = WR + 8*u + 2*x, WR + 8*u + 2*x + 1
                e(f"  v_perm_b32 v{WE+8*u+x}, v{b}, v{a}, s{sSELLO}")
                e(f"  v_perm_b32 v{WE+8*u+4+x}, v{b}, v{a}, s{sSELHI}")
    e("  s_waitcnt lgkmcnt(0)")
    for n in range(8):
        e(f"  s_add_u32 m0, s{sSLOT}, {n*1024}")
        if n: e(f"  s_add_u32 s{sOFF0}, s{sOFF0}, {16*1024}")
        else: e("  s_nop 0")
        if n == 0: pos_wo = len(L)
        e(f"  buffer_load_dwordx4 v{vKOFF}, {SR(sWO)}, s{sOFF0} offen{wf} lds")
    wo_block = L[pos_wo-2:]; del L[pos_wo-2:]
    perms()
    nop(2)
    for u in range(4):
        for par in range(2):
            c = "0" if u == 0 else Rg(vS+4*par)
            e(f"  v_mfma_f32_16x16x32_bf16 {Rg(vS+4*par)}, {Rg(WE+8*u+4*par)}, {Rg(vQ+4*u)}, {c}")
    e("  s_mov_b32 exec_lo, 0x000f000f")
    e("  s_mov_b32 exec_hi, 0x000f000f")
    nop(8)
    e(f"  ds_write_b128 v{vT4}, {Rg(vS)} offset:{L_QP}")
    e(f"  ds_write_b128 v{vT4}, {Rg(vS+4)} offset:{L_QP+16}")
    e("  s_mov_b64 exec, 1")
    e(f"  ds_add_u32 v{vZ}, v{vONE} offset:{F_QCNT}")
    e("  s_mov_b64 exec, -1")
    stamp(2)
    L.extend(wo_block)
    e("  s_waitcnt vmcnt(0)")
    for u in range(4):
        for q in range(8):
            e(f"  ds_read_b32 v{WR+8*u+q}, v{vA} offset:{u*2048+(q&3)*512+(q>>2)*64}")
    e("  s_waitcnt lgkmcnt(0)")
    e("  s_mov_b64 exec, 1")
    e(f"  ds_add_u32 v{vZ}, v{vONE} offset:{F_WDONE}")
    e("  s_mov_b64 exec, -1")
    perms()
    stamp(3)
    Bq = vVT; MLr = vVT + 16
    e(f"  v_lshlrev_b32 v{vT0}, 8, v{vJ}")
    e(f"  v_lshl_add_u32 v{vT0}, v{vG}, 4, v{vT0}")
    e(f"  v_lshlrev_b32 v{vT1}, 3, v{vJ}")
    e(f"  s_lshl_b32 s{sTMP}, s{sTEAM}, 2")
    e(f"  s_add_u32 s{sTMP}, s{sTMP}, s{sB}")
    e(f"  s_lshl_b32 s{sOFF0}, s{sTMP}, 12")
    e(f"  s_add_u32 s{sOFF0}, s{sOFF0}, {WS_H1}")
    e(f"  s_lshl_b32 s{sOFF1}, s{sTMP}, 7")
    e(f"  s_add_u32 s{sOFF1}, s{sOFF1}, {WS_ML}")
    e(f"  v_bfe_u32 v{vA}, v{vLANE}, 1, 1")
    e(f"  v_lshl_add_u32 v{vA}, v{vG}, 1, v{vA}")
    e(f"  v_lshlrev_b32 v{vA}, 11, v{vA}")
    e(f"  v_and_b32 v{vT5}, 1, v{vLANE}")
    e(f"  v_lshl_add_u32 v{vA}, v{vT5}, 5, v{vA}")
    e(f"  s_lshl_b32 s{sNEXT}, s{sP}, 2")
    e(f"  s_add_u32 s{sNEXT}, s{sNEXT}, s{sS}")
    e(f"  s_lshl_b32 s{sNEXT}, s{sNEXT}, 16")
    e(f"  s_lshl_b32 s{sTMP2}, s{sU}, 14")
    e(f"  s_add_u32 s{sNEXT}, s{sNEXT}, s{sTMP2}")
    e(f"  s_lshl_b32 s{sTMP2}, s{sH}, 2")
    e(f"  s_add_u32 s{sTMP2}, s{sTMP2}, s{sB}")
    e(f"  s_lshl_b32 s{sTMP2}, s{sTMP2}, 6")
    e(f"  s_add_u32 s{sNEXT}, s{sNEXT}, s{sTMP2}")
    e(f"  s_add_u32 s{sNEXT}, s{sNEXT}, {WS_H2}")
    X = vK
    e(f"  s_lshl_b32 s{sTMP2}, s{sH}, 2")
    e(f"  s_add_u32 s{sTMP2}, s{sTMP2}, s{sB}")
    e(f"  s_lshl_b32 s{sTMP}, s{sP}, 2")
    e(f"  s_add_u32 s{sTMP}, s{sTMP}, s{sS}")
    e(f"  s_lshl_b32 s{sRO0}, s{sTMP}, 16")
    e(f"  s_lshl_b32 s{sRO1}, s{sTMP2}, 11")
    e(f"  s_add_u32 s{sRO0}, s{sRO0}, s{sRO1}")
    e(f"  s_add_u32 s{sRO0}, s{sRO0}, {WS_H2}")
    e(f"  s_lshl_b32 s{sRO1}, s{sTMP}, 8")
    e(f"  s_and_b32 s{sTMP}, s{sTMP2}, 1")
    e(f"  s_lshl_b32 s{sTMP}, s{sTMP}, 12")
    e(f"  s_add_u32 s{sRO1}, s{sRO1}, s{sTMP}")
    e(f"  s_lshr_b32 s{sTMP}, s{sTMP2}, 1")
    e(f"  s_lshl_b32 s{sTMP}, s{sTMP}, 4")
    e(f"  s_add_u32 s{sRO1}, s{sRO1}, s{sTMP}")
    e(f"  v_lshlrev_b32 v{vM}, 10, v{vLANE}")
    e(f"  s_mov_b32 s{sPOLL}, 0")
    e("  s_waitcnt lgkmcnt(0)")
    e("  s_barrier")
    stamp(6)
    e("L_tpoll:")
    for u in range(4):
        e(f"  buffer_load_dwordx4 {Rg(Bq+4*u)}, v{vT0}, {SR(sWS)}, s{sOFF0} offen offset:{64*u} sc1")
    e(f"  buffer_load_dwordx2 {Rg(MLr,2)}, v{vT1}, {SR(sWS)}, s{sOFF1} offen sc1")
    e(f"  s_add_u32 s{sPOLL}, s{sPOLL}, 1")
    e("  s_waitcnt vmcnt(0)")
    e(f"  v_max3_u32 v{vT2}, v{Bq}, v{Bq+1}, v{Bq+2}")
    e(f"  v_max3_u32 v{vT3}, v{Bq+3}, v{Bq+4}, v{Bq+5}")
    e(f"  v_max3_u32 v{vT4}, v{Bq+6}, v{Bq+7}, v{Bq+8}")
    e(f"  v_max3_u32 v{vT2}, v{vT2}, v{Bq+9}, v{Bq+10}")
    e(f"  v_max3_u32 v{vT3}, v{vT3}, v{Bq+11}, v{Bq+12}")
    e(f"  v_max3_u32 v{vT4}, v{vT4}, v{Bq+13}, v{Bq+14}")
    e(f"  v_max3_u32 v{vT2}, v{vT2}, v{Bq+15}, v{MLr}")
    e(f"  v_max3_u32 v{vT3}, v{vT3}, v{vT4}, v{MLr+1}")
    e(f"  v_max_u32 v{vT2}, v{vT2}, v{vT3}")
    e(f"  v_cmp_eq_u32 vcc, -1, v{vT2}")
    e(f"  s_cmp_ge_u32 s{sPOLL}, {POLL_MAX}")
    e("  s_cbranch_scc1 L_tok")
    e("  s_cbranch_vccz L_tok")
    backoff("L_tbk", "L_tpoll", bk)
    e("L_tok:")
    e("  s_mov_b64 exec, -1")
    stamp(5)
    for u in range(4):
        for par in range(2):
            c = "0" if u == 0 else Rg(vS+4*par)
            e(f"  v_mfma_f32_16x16x32_bf16 {Rg(vS+4*par)}, {Rg(WE+8*u+4*par)}, {Rg(Bq+4*u)}, {c}")
    e(f"  v_max_f32_dpp v{vT2}, v{MLr}, v{MLr} row_ror:4 {dpp}")
    nop(2)
    e(f"  v_max_f32_dpp v{vT2}, v{vT2}, v{vT2} row_ror:8 {dpp}")
    e(f"  v_sub_f32 v{vT2}, v{MLr}, v{vT2}")
    e(f"  v_exp_f32 v{vT2}, v{vT2}")
    nop(1)
    e(f"  v_mul_f32 v{vT2}, v{vT2}, v{MLr+1}")
    nop(2)
    e(f"  v_add_f32_dpp v{vT3}, v{vT2}, v{vT2} row_ror:4 {dpp}")
    nop(2)
    e(f"  v_add_f32_dpp v{vT3}, v{vT3}, v{vT3} row_ror:8 {dpp}")
    e(f"  v_rcp_f32 v{vT3}, v{vT3}")
    nop(1)
    e(f"  v_mul_f32 v{vT2}, v{vT2}, v{vT3}")
    for k in range(8):
        e(f"  v_mul_f32 v{vS+k}, v{vS+k}, v{vT2}")
    for k in range(8):
        e(f"  v_add_f32_dpp v{vS+k}, v{vS+k}, v{vS+k} row_ror:4 {dpp}")
    for k in range(8):
        e(f"  v_add_f32_dpp v{vS+k}, v{vS+k}, v{vS+k} row_ror:8 {dpp}")
    for k in range(8):
        e(f"  v_min_u32 v{vS+k}, -2, v{vS+k}")
    e("  s_mov_b32 exec_lo, 0x000f000f")
    e("  s_mov_b32 exec_hi, 0x000f000f")
    e(f"  buffer_store_dwordx4 {Rg(vS)}, v{vA}, {SR(sWS)}, s{sNEXT} offen sc1")
    e(f"  buffer_store_dwordx4 {Rg(vS+4)}, v{vA}, {SR(sWS)}, s{sNEXT} offen offset:16 sc1")
    e(f"  s_cmp_lg_u32 s{sW}, {redw}")
    e("  s_cbranch_scc1 " + ("L_fin" if stamps else "L_end"))
    e("  s_mov_b64 exec, -1")
    e(f"  s_mov_b32 s{sPOLL}, 0")
    e("L_rpoll:")
    e(f"  buffer_load_dwordx4 {Rg(X)}, v{vVOFF}, {SR(sWS)}, s{sRO0} offen sc1")
    e(f"  buffer_load_dwordx4 {Rg(X+4)}, v{vVOFF}, {SR(sWS)}, s{sRO0} offen offset:1024 sc1")
    e(f"  s_add_u32 s{sPOLL}, s{sPOLL}, 1")
    e("  s_waitcnt vmcnt(0)")
    e(f"  v_max3_u32 v{vT2}, v{X}, v{X+1}, v{X+2}")
    e(f"  v_max3_u32 v{vT3}, v{X+3}, v{X+4}, v{X+5}")
    e(f"  v_max3_u32 v{vT2}, v{vT2}, v{X+6}, v{X+7}")
    e(f"  v_max_u32 v{vT2}, v{vT2}, v{vT3}")
    e(f"  v_cmp_eq_u32 vcc, -1, v{vT2}")
    e(f"  s_cmp_ge_u32 s{sPOLL}, {POLL_MAX}")
    e("  s_cbranch_scc1 L_rok")
    e("  s_cbranch_vccz L_rok")
    backoff("L_rbk", "L_rpoll", rbk)
    e("L_rok:")
    e("  s_mov_b64 exec, -1")
    stamp(4)
    for k in range(4):
        e(f"  v_add_f32 v{X+k}, v{X+k}, v{X+4+k}")
    for k in range(4):
        e(f"  v_add_f32_dpp v{X+k}, v{X+k}, v{X+k} row_ror:4 {dpp}")
    for k in range(4):
        e(f"  v_add_f32_dpp v{X+k}, v{X+k}, v{X+k} row_ror:8 {dpp}")
    for op in ("v_permlane16_swap_b32", "v_permlane32_swap_b32"):
        for k in range(4):
            e(f"  v_mov_b32 v{X+4+k}, v{X+k}")
        nop(2)
        for k in range(4):
            e(f"  {op} v{X+k}, v{X+4+k}")
        nop(1)
        for k in range(4):
            e(f"  v_add_f32 v{X+k}, v{X+k}, v{X+4+k}")
    nop(2)
    for k in range(4):
        e(f"  v_mov_b32_dpp v{X+4+k}, v{X+k} quad_perm:[1,1,3,3] {dpp}")
    for k in range(4):
        e(f"  v_cvt_pk_bf16_f32 v{vP+k}, v{X+k}, v{X+4+k}")
    e("  s_mov_b64 exec, 5")
    e(f"  buffer_store_dwordx4 {Rg(vP)}, v{vM}, {SR(sOUT)}, s{sRO1} offen")
    if stamps: e("  s_waitcnt vmcnt(0)")
    fin()


    e("L_loader:")
    e("  s_setprio 1")
    e(f"  v_lshlrev_b32 v{vKOFF}, 10, v{vT1}")
    e(f"  v_lshl_add_u32 v{vKOFF}, v{vT2}, 8, v{vKOFF}")
    e(f"  v_lshl_add_u32 v{vKOFF}, v{vG}, 4, v{vKOFF}")
    e(f"  s_lshl_b32 s{sNEXT}, s{sB}, 3")
    e(f"  s_add_u32 s{sNEXT}, s{sNEXT}, s{sH}")
    e(f"  s_lshl_b32 s{sNEXT}, s{sNEXT}, 2")
    e(f"  s_add_u32 s{sNEXT}, s{sNEXT}, s{sS}")
    e(f"  s_lshl_b32 s{sNEXT}, s{sNEXT}, 20")
    e(f"  s_mov_b32 s{sSLOT}, {L_RING}")
    e(f"  s_mov_b32 s{sT}, 0")
    e(f"  s_mov_b32 s{sFIDX}, {4 * ((-R) % C)}")
    ngrp = 16 // grp
    lag = (infl - grp) // grp
    def publish(expr_add):
        e(f"  s_add_i32 s{sTMP2}, s{sT}, {expr_add}")
        e(f"  v_mov_b32 v{vT0}, s{sTMP2}")
        e("  s_mov_b64 exec, 1")
        e(f"  ds_max_i32 v{vZ}, v{vT0} offset:{F_LAND}")
        e("  s_mov_b64 exec, -1")
    def issue_tile(first=False):
        e(f"  s_add_u32 s{sOFF1}, s{sNEXT}, 4096")
        for j in range(16):
            if j % grp == 0 and not first:
                g_ = j // grp
                e(f"  s_waitcnt vmcnt({infl - grp})")
                if (g_ - lag) % ngrp == 0:
                    publish((g_ - lag) // ngrp)
            isK = j < 8; jj = j % 8; T, u = jj // 4, jj % 4
            so = f"s{sNEXT}" if T == 0 else f"s{sOFF1}"
            if isK:
                e(f"  s_add_u32 m0, s{sSLOT}, {j*1024 - u*64}")
                e("  s_nop 0")
                e(f"  buffer_load_dwordx4 v{vKOFF}, {SR(sK)}, {so} offen offset:{u*64}{kf} lds")
            else:
                if u == 0:
                    e(f"  s_add_u32 m0, s{sSLOT}, {j*1024}")
                    e("  s_nop 0")
                e(f"  buffer_load_dwordx4 v{vVOFF}, {SR(sV)}, {so} offen offset:{u*1024}{kf} lds")
        e(f"  s_add_u32 s{sNEXT}, s{sNEXT}, 8192")
        e(f"  s_add_u32 s{sSLOT}, s{sSLOT}, 16384")
        e(f"  s_cmp_ge_u32 s{sSLOT}, {LDS_BYTES}")
        e(f"  s_cselect_b32 s{sSLOT}, {L_RING}, s{sSLOT}")
        e(f"  s_xor_b32 s{sFIDX}, s{sFIDX}, 4")
        e(f"  s_add_u32 s{sT}, s{sT}, 1")
    issue_tile(first=True)
    e("  s_barrier")
    stamp(1)
    def drain_pub():
        e("  s_waitcnt vmcnt(0)")
        publish(0)
    e("L_lloop:")
    if stamps:
        for k, X in enumerate((16, 64)):
            e(f"  s_cmp_lg_u32 s{sT}, {X}")
            e(f"  s_cbranch_scc1 L_ps{k}")
            stamp(2 + k)
            e(f"L_ps{k}:")
    e(f"  s_cmp_lg_u32 s{sT}, {R-2}")
    e("  s_cbranch_scc1 L_nowd")
    lds_wait("L_wd", vZ, F_WDONE, 4, pre=drain_pub)
    e("L_nowd:")
    e(f"  s_cmp_lt_u32 s{sT}, {R}")
    e("  s_cbranch_scc1 L_isfree")
    e(f"  v_mov_b32 v{vA}, s{sFIDX}")
    e(f"  s_sub_u32 s{sOFF0}, s{sT}, {R-1}")
    lds_wait("L_free", vA, F_FREE, f"s{sOFF0}", pre=drain_pub)
    e("L_isfree:")
    issue_tile()
    e(f"  s_cmp_lt_u32 s{sT}, {NT}")
    e("  s_cbranch_scc1 L_lloop")
    e("  s_waitcnt vmcnt(16)")
    publish(-1)
    e("  s_waitcnt vmcnt(0)")
    publish(0)
    stamp(4)
    e("  s_waitcnt lgkmcnt(0)")
    e("  s_barrier")
    stamp(6)
    fin()

    e("L_helper:")
    e("  s_setprio 3")
    e(f"  s_load_dword s{sTAG}, s[40:41], {WS_E:#x}")
    e("  s_barrier")
    e(f"  v_lshl_add_u32 v{vT0}, v{vT2}, 2, v{vG}")
    e(f"  v_lshlrev_b32 v{vT0}, 5, v{vT0}")
    e(f"  v_lshl_add_u32 v{vT0}, v{vT1}, 2, v{vT0}")
    e(f"  v_lshlrev_b32 v{vT2}, 14, v{vG}")
    e(f"  v_lshl_add_u32 v{vT2}, v{vJ}, 3, v{vT2}")
    e(f"  s_lshl_b32 s{sOFF0}, s{sP}, 16")
    e(f"  s_lshl_b32 s{sTMP2}, s{sH}, 11")
    e(f"  s_add_u32 s{sOFF0}, s{sOFF0}, s{sTMP2}")
    e(f"  s_lshl_b32 s{sOFF1}, s{sMU}, 7")
    e(f"  s_add_u32 s{sOFF1}, s{sOFF1}, s{sOFF0}")
    e(f"  s_lshl_b32 s{sTMP2}, s{sB}, 14")
    e(f"  s_add_u32 s{sOFF0}, s{sOFF0}, s{sTMP2}")
    e("  s_waitcnt lgkmcnt(0)")
    e(f"  s_add_u32 s{sTAG}, s{sTAG}, 0x9e3779b9")
    e(f"  v_mov_b32 v{vP+1}, s{sTAG}")
    e(f"  v_mov_b32 v{vP+3}, s{sTAG}")
    lds_wait("L_qcnt", vZ, F_QCNT, 4, sleep=0)
    stamp(1)
    for w in range(4):
        e(f"  ds_read_b32 v{vVT+2*w}, v{vT0} offset:{L_QP+w*512}")
        e(f"  ds_read_b32 v{vVT+2*w+1}, v{vT0} offset:{L_QP+w*512+16}")
    e("  s_waitcnt lgkmcnt(0)")
    for st in (1, 2):
        for half in range(2):
            for w in range(0, 4, 2*st):
                e(f"  v_add_f32 v{vVT+2*w+half}, v{vVT+2*w+half}, v{vVT+2*(w+st)+half}")
    e(f"  v_cvt_pk_bf16_f32 v{vP}, v{vVT}, v{vVT+1}")
    nop(2)
    e(f"  v_mov_b32_dpp v{vP+2}, v{vP} quad_perm:[1,1,3,3] {dpp}")
    e("  s_mov_b32 exec_lo, 0x55555555")
    e("  s_mov_b32 exec_hi, 0x55555555")
    e(f"  buffer_store_dwordx4 {Rg(vP)}, v{vT2}, {SR(sWS)}, s{sOFF1} offen sc1")
    e("  s_mov_b64 exec, -1")
    stamp(2)
    QX = vK
    e(f"  s_mov_b32 s{sPOLL}, 0")
    e("L_qpoll:")
    e(f"  buffer_load_dwordx4 {Rg(QX)}, v{vVOFF}, {SR(sWS)}, s{sOFF0} offen sc1")
    e(f"  buffer_load_dwordx4 {Rg(QX+4)}, v{vVOFF}, {SR(sWS)}, s{sOFF0} offen offset:1024 sc1")
    e(f"  s_add_u32 s{sPOLL}, s{sPOLL}, 1")
    e("  s_waitcnt vmcnt(0)")
    e(f"  v_xor_b32 v{vT3}, s{sTAG}, v{QX+1}")
    e(f"  v_xor_b32 v{vT4}, s{sTAG}, v{QX+3}")
    e(f"  v_xor_b32 v{vT5}, s{sTAG}, v{QX+5}")
    e(f"  v_xor_b32 v{vT1}, s{sTAG}, v{QX+7}")
    e(f"  v_or3_b32 v{vT3}, v{vT3}, v{vT4}, v{vT5}")
    e(f"  v_or_b32 v{vT3}, v{vT3}, v{vT1}")
    e(f"  v_cmp_ne_u32 vcc, 0, v{vT3}")
    e(f"  s_cmp_ge_u32 s{sPOLL}, {POLL_MAX}")
    e("  s_cbranch_scc1 L_qok")
    e("  s_cbranch_vccz L_qok")
    e("  s_mov_b64 exec, vcc")
    e("  s_branch L_qpoll")
    e("L_qok:")
    e("  s_mov_b64 exec, -1")
    stamp(3)
    e(f"  v_lshlrev_b32 v{vT0}, 3, v{vLANE}")
    e(f"  v_add_u32 v{vT0}, {L_QF}, v{vT0}")
    e(f"  ds_write2_b32 v{vT0}, v{QX}, v{QX+2} offset0:0 offset1:1")
    e(f"  ds_write2_b32 v{vT0}, v{QX+4}, v{QX+6} offset0:128 offset1:129")
    e(f"  ds_write_b32 v{vZ}, v{vONE} offset:{F_QRDY}")
    for k in range(4): e(f"  v_mov_b32 v{vV+k}, -1")
    if noclean: e(f"  s_mov_b32 s{sWS+2}, 0")
    e(f"  s_lshl_b32 s{sTMP}, s2, 10")
    e(f"  s_add_u32 s{sTMP}, s{sTMP}, {WS_H1}")
    e(f"  buffer_store_dwordx4 {Rg(vV)}, v{vVOFF}, {SR(sWS)}, s{sTMP} offen sc1")
    e(f"  s_lshl_b32 s{sTMP}, s2, 11")
    e(f"  s_add_u32 s{sTMP}, s{sTMP}, {WS_H2}")
    e(f"  buffer_store_dwordx4 {Rg(vV)}, v{vVOFF}, {SR(sWS)}, s{sTMP} offen sc1")
    e(f"  buffer_store_dwordx4 {Rg(vV)}, v{vVOFF}, {SR(sWS)}, s{sTMP} offen offset:1024 sc1")
    e(f"  s_lshl_b32 s{sTMP}, s2, 5")
    e(f"  s_add_u32 s{sTMP}, s{sTMP}, {WS_ML}")
    e("  s_mov_b64 exec, 3")
    e(f"  buffer_store_dwordx4 {Rg(vV)}, v{vVOFF}, {SR(sWS)}, s{sTMP} offen sc1")
    e("  s_mov_b64 exec, 1")
    e(f"  s_lshl_b32 s{sTMP2}, s{sTEAM}, 4")
    e("  s_waitcnt vmcnt(0)")
    e(f"  buffer_atomic_add v{vONE}, v{vZ}, {SR(sDBG)}, s{sTMP2} offen sc1")
    if noclean: e(f"  s_mov_b32 s{sWS+2}, {WS_USED}")
    e(f"  s_mov_b32 s{sPOLL}, 0")
    e("  s_mov_b64 exec, 0xffff")
    e("L_ipoll:")
    e("  s_sleep 100")
    e(f"  buffer_load_dword v{vT3}, v{vVOFF}, {SR(sDBG)}, 0 offen sc1")
    e(f"  s_add_u32 s{sPOLL}, s{sPOLL}, 1")
    e("  s_waitcnt vmcnt(0)")
    e(f"  v_cmp_gt_u32 vcc, 16, v{vT3}")
    e(f"  s_cmp_ge_u32 s{sPOLL}, {POLL_MAX}")
    e("  s_cbranch_scc1 L_iok")
    e("  s_cbranch_vccnz L_ipoll")
    e("L_iok:")
    e("  s_cmp_lg_u32 s2, 0")
    e("  s_cbranch_scc1 L_noep")
    e("  s_mov_b64 exec, 1")
    e(f"  v_mov_b32 v{vT3}, s{sTAG}")
    e(f"  s_mov_b32 s{sTMP}, {WS_E}")
    e(f"  buffer_store_dword v{vT3}, v{vZ}, {SR(sWS)}, s{sTMP} offen sc1")
    e("L_noep:")
    e("  s_mov_b64 exec, -1")
    stamp(4)
    A = vK; ML = vVT
    e(f"  v_lshlrev_b32 v{vT0}, 5, v{vLANE}")
    e(f"  v_lshl_add_u32 v{vT0}, v{vG}, 4, v{vT0}")
    e(f"  v_lshlrev_b32 v{vT1}, 4, v{vG}")
    e(f"  v_lshlrev_b32 v{vT4}, 12, v{vG}")
    e(f"  v_lshl_add_u32 v{vT4}, v{vJ}, 4, v{vT4}")
    e(f"  v_lshlrev_b32 v{vT5}, 7, v{vG}")
    e(f"  s_lshl_b32 s{sTMP}, s{sS}, 2")
    e(f"  s_add_u32 s{sTMP}, s{sTMP}, s{sB}")
    e(f"  s_lshl_b32 s{sOFF0}, s{sTMP}, 8")
    e(f"  s_lshl_b32 s{sTMP2}, s{sTEAM}, 14")
    e(f"  s_add_u32 s{sOFF0}, s{sOFF0}, s{sTMP2}")
    e(f"  s_add_u32 s{sOFF0}, s{sOFF0}, {WS_H1}")
    e(f"  s_lshl_b32 s{sOFF1}, s{sTMP}, 3")
    e(f"  s_lshl_b32 s{sTMP2}, s{sTEAM}, 9")
    e(f"  s_add_u32 s{sOFF1}, s{sOFF1}, s{sTMP2}")
    e(f"  s_add_u32 s{sOFF1}, s{sOFF1}, {WS_ML}")
    e("  s_waitcnt lgkmcnt(0)")
    e("  s_barrier")
    stamp(6)
    e(f"  ds_read_b128 {Rg(ML)}, v{vT1} offset:{L_ML}")
    for w in range(C):
        e(f"  ds_read_b128 {Rg(A+8*w)}, v{vT0} offset:{L_SLAB+w*SLAB_STRIDE}")
        e(f"  ds_read_b128 {Rg(A+8*w+4)}, v{vT0} offset:{L_SLAB+w*SLAB_STRIDE+16}")
    e(f"  s_waitcnt lgkmcnt({2*C})")
    e(f"  v_max_f32 v{vM}, v{ML}, v{ML+2}")
    for w in range(C):
        e(f"  v_sub_f32 v{ML+2*w}, v{ML+2*w}, v{vM}")
    for w in range(C):
        e(f"  v_mul_f32 v{ML+2*w}, s{sC}, v{ML+2*w}")
    for w in range(C):
        e(f"  v_exp_f32 v{ML+2*w}, v{ML+2*w}")
    e(f"  v_mul_f32 v{vM}, s{sC}, v{vM}")
    e(f"  v_mul_f32 v{vL}, v{ML}, v{ML+1}")
    e(f"  v_fmac_f32 v{vL}, v{ML+2}, v{ML+3}")
    e(f"  v_rcp_f32 v{vT2}, v{vL}")
    e(f"  v_min_u32 v{vM}, -2, v{vM}")
    e(f"  v_mul_f32 v{ML}, v{ML}, v{vT2}")
    e(f"  v_mul_f32 v{ML+2}, v{ML+2}, v{vT2}")
    e(f"  v_min_u32 v{vL}, -2, v{vL}")
    e("  s_waitcnt lgkmcnt(0)")
    for k in range(8):
        e(f"  v_mul_f32 v{A+k}, v{A+k}, v{ML}")
    for k in range(8):
        e(f"  v_fmac_f32 v{A+k}, v{A+8+k}, v{ML+2}")
    for x in range(4):
        e(f"  v_cvt_pk_bf16_f32 v{vP+x}, v{A+2*x}, v{A+2*x+1}")
    for x in range(4):
        e(f"  v_min_u32 v{vP+x}, -2, v{vP+x}")
    e(f"  buffer_store_dwordx4 {Rg(vP)}, v{vT4}, {SR(sWS)}, s{sOFF0} offen sc1")
    e("  s_mov_b32 exec_lo, 0x00010001")
    e("  s_mov_b32 exec_hi, 0x00010001")
    e(f"  buffer_store_dwordx2 {Rg(vM,2)}, v{vT5}, {SR(sWS)}, s{sOFF1} offen sc1")
    fin()

    e("L_cons:")
    e(f"  v_lshlrev_b32 v{vT0}, 2, v{vJ}")
    e(f"  ds_write_b32 v{vT0}, v{vZ} offset:{L_FLAG}")
    e(f"  s_sub_u32 s{sT}, s{sW}, 1")
    e(f"  s_lshl_b32 s{sSLOT}, s{sT}, 14")
    e(f"  s_add_u32 s{sSLOT}, s{sSLOT}, {L_RING}")
    e(f"  s_lshl_b32 s{sTMP}, s{sT}, 2")
    e(f"  v_mov_b32 v{vKOFF}, s{sTMP}")
    e(f"  s_mov_b32 s{sFIRST}, 1")
    e("  s_waitcnt lgkmcnt(0)")
    e("  s_barrier")
    e(f"  v_mov_b32 v{vM}, {f32bits(-1e30):#x}")
    e(f"  v_mov_b32 v{vL}, 0")
    for k in range(32): e(f"  v_mov_b32 v{vO+k}, 0")
    e("L_cloop:")
    e(f"  s_add_u32 s{sOFF0}, s{sT}, 1")
    e(f"  v_add_u32 v{vA}, s{sSLOT}, v{vVOFF}")
    lds_wait("L_land", vZ, F_LAND, f"s{sOFF0}")
    for j in range(16):
        e(f"  ds_read_b128 {Rg(vK+4*j)}, v{vA} offset:{1024*j}")
    e(f"  v_mov_b32 v{vT0}, s{sOFF0}")
    e("  s_waitcnt lgkmcnt(0)")
    e(f"  ds_write_b32 v{vKOFF}, v{vT0} offset:{F_FREE}")
    e(f"  s_cmp_eq_u32 s{sFIRST}, 0")
    e("  s_cbranch_scc1 L_haveq")
    e(f"  s_mov_b32 s{sFIRST}, 0")
    stamp(1)
    lds_wait("L_qwait", vZ, F_QRDY, 1)
    e(f"  v_lshlrev_b32 v{vT0}, 8, v{vLANE}")
    e(f"  v_and_b32 v{vT0}, 0x300, v{vT0}")
    e(f"  v_lshl_add_u32 v{vT0}, v{vG}, 4, v{vT0}")
    for u in range(4):
        e(f"  ds_read_b128 {Rg(vQ+4*u)}, v{vT0} offset:{L_QF+64*u}")
    e("  s_waitcnt lgkmcnt(0)")
    stamp(2)
    e("L_haveq:")
    for u in range(4):
        for T in range(2):
            c = "0" if u == 0 else Rg(vS+4*T)
            e(f"  v_mfma_f32_16x16x32_bf16 {Rg(vS+4*T)}, {Rg(vK+4*(4*T+u))}, {Rg(vQ+4*u)}, {c}")
    for d in range(8):
        w_, sel = d >> 1, (sSELHI if d & 1 else sSELLO)
        for x in range(4):
            e(f"  v_perm_b32 v{vVT+4*d+x}, v{vV+4*(2*x+1)+w_}, v{vV+4*(2*x)+w_}, s{sel}")
    e(f"  v_max3_f32 v{vT0}, v{vS}, v{vS+1}, v{vS+2}")
    e(f"  v_max3_f32 v{vT1}, v{vS+3}, v{vS+4}, v{vS+5}")
    e(f"  v_max3_f32 v{vT0}, v{vT0}, v{vS+6}, v{vS+7}")
    e(f"  v_max3_f32 v{vT0}, v{vT0}, v{vT1}, v{vM}")
    e(f"  v_mov_b32 v{vT1}, v{vT0}")
    nop(2)
    e(f"  v_permlane16_swap_b32 v{vT0}, v{vT1}")
    nop(1)
    e(f"  v_max_f32 v{vT0}, v{vT0}, v{vT1}")
    e(f"  v_mov_b32 v{vT1}, v{vT0}")
    nop(2)
    e(f"  v_permlane32_swap_b32 v{vT0}, v{vT1}")
    nop(1)
    e(f"  v_max_f32 v{vT0}, v{vT0}, v{vT1}")
    e(f"  v_cmp_neq_f32 vcc, v{vT0}, v{vM}")
    e(f"  v_sub_f32 v{vT2}, v{vM}, v{vT0}")
    e(f"  v_mul_f32 v{vT2}, s{sC}, v{vT2}")
    e(f"  v_exp_f32 v{vT2}, v{vT2}")
    e(f"  v_mov_b32 v{vM}, v{vT0}")
    e(f"  v_mul_f32 v{vT3}, s{sC}, v{vT0}")
    for k in range(8):
        e(f"  v_fma_f32 v{vS+k}, v{vS+k}, s{sC}, -v{vT3}")
    for k in range(8):
        e(f"  v_exp_f32 v{vS+k}, v{vS+k}")
    e(f"  v_mul_f32 v{vL}, v{vL}, v{vT2}")
    for x in range(4):
        e(f"  v_cvt_pk_bf16_f32 v{vP+x}, v{vS+2*x}, v{vS+2*x+1}")
    e(f"  v_add_f32 v{vT0}, v{vS}, v{vS+1}")
    e(f"  v_add_f32 v{vT1}, v{vS+2}, v{vS+3}")
    e(f"  v_add_f32 v{vT3}, v{vS+4}, v{vS+5}")
    e(f"  v_add_f32 v{vT4}, v{vS+6}, v{vS+7}")
    e(f"  v_add_f32 v{vT0}, v{vT0}, v{vT1}")
    e(f"  v_add_f32 v{vT3}, v{vT3}, v{vT4}")
    e(f"  v_add_f32 v{vL}, v{vL}, v{vT0}")
    e(f"  v_add_f32 v{vL}, v{vL}, v{vT3}")
    e("  s_cbranch_vccz L_nores")
    for k in range(32):
        e(f"  v_mul_f32 v{vO+k}, v{vO+k}, v{vT2}")
    nop(2)
    e("L_nores:")
    for d in range(8):
        e(f"  v_mfma_f32_16x16x32_bf16 {Rg(vO+4*d)}, {Rg(vVT+4*d)}, {Rg(vP)}, {Rg(vO+4*d)}")
    e(f"  s_add_u32 s{sSLOT}, s{sSLOT}, {C*16384}")
    e(f"  s_cmp_ge_u32 s{sSLOT}, {LDS_BYTES}")
    e(f"  s_cselect_b32 s{sTMP}, {R*16384}, 0")
    e(f"  s_sub_u32 s{sSLOT}, s{sSLOT}, s{sTMP}")
    e(f"  s_add_u32 s{sT}, s{sT}, {C}")
    e(f"  s_cmp_lt_u32 s{sT}, {NT}")
    e("  s_cbranch_scc1 L_cloop")
    e(f"  v_mov_b32 v{vT1}, v{vL}")
    e(f"  v_mul_u32_u24 v{vT0}, {HEAD_STRIDE}, v{vJ}")
    e(f"  v_lshl_add_u32 v{vT0}, v{vG}, 7, v{vT0}")
    e(f"  v_permlane16_swap_b32 v{vL}, v{vT1}")
    e(f"  s_sub_u32 s{sTMP2}, s{sW}, 1")
    e(f"  v_add_f32 v{vL}, v{vL}, v{vT1}")
    e(f"  v_mov_b32 v{vT1}, v{vL}")
    e(f"  s_mul_i32 s{sTMP}, s{sTMP2}, {SLAB_STRIDE}")
    e(f"  v_add_u32 v{vT0}, s{sTMP}, v{vT0}")
    e(f"  v_permlane32_swap_b32 v{vL}, v{vT1}")
    e(f"  s_lshl_b32 s{sTMP}, s{sTMP2}, 3")
    e(f"  v_add_f32 v{vL}, v{vL}, v{vT1}")
    e(f"  v_lshlrev_b32 v{vT1}, 4, v{vJ}")
    e(f"  v_add_u32 v{vT1}, s{sTMP}, v{vT1}")
    e("  s_mov_b32 exec_lo, 0x000f000f")
    e("  s_mov_b32 exec_hi, 0x000f000f")
    for d in range(8):
        e(f"  ds_write_b128 v{vT0}, {Rg(vO+4*d)} offset:{L_SLAB+16*d}")
    e("  s_mov_b64 exec, 15")
    e(f"  ds_write_b64 v{vT1}, {Rg(vM,2)} offset:{L_ML}")
    stamp(4)
    e("  s_waitcnt lgkmcnt(0)")
    e("  s_barrier")
    stamp(6)
    if stamps:
        e("L_fin:")
        stamp(7)
        e("  s_waitcnt lgkmcnt(0)")
        e(f"  s_mov_b32 s{sWS+2}, {WS_BYTES}")
        e(f"  s_lshl_b32 s{sTMP}, s2, 3")
        e(f"  s_add_u32 s{sTMP}, s{sTMP}, s{sW}")
        e(f"  s_lshl_b32 s{sTMP}, s{sTMP}, 6")
        e(f"  s_add_u32 s{sTMP}, s{sTMP}, {STAMP_OFF}")
        e("  s_mov_b64 exec, 1")
        for k in range(16): e(f"  v_mov_b32 v{vO+k}, s{sST+k}")
        for k in range(4): e(f"  buffer_store_dwordx4 {Rg(vO+4*k)}, v{vZ}, {SR(sWS)}, s{sTMP} offen offset:{16*k}")
    e("L_end:")
    e("  s_endpgm")
    e('.section .rodata,"a"')
    e(".p2align 6")
    e(f".amdhsa_kernel {NAME}_kernel")
    e(f"  .amdhsa_next_free_vgpr {NV}")
    e("  .amdhsa_next_free_sgpr 102")
    e(f"  .amdhsa_accum_offset {(NV+3)//4*4}")
    e("  .amdhsa_group_segment_fixed_size 0")
    e("  .amdhsa_kernarg_size 104")
    e("  .amdhsa_user_sgpr_count 2")
    e("  .amdhsa_user_sgpr_kernarg_segment_ptr 1")
    e("  .amdhsa_system_sgpr_workgroup_id_x 1")
    e(".end_amdhsa_kernel")
    return "\n".join(L) + "\n"

if __name__ == "__main__":
    os.makedirs("exp", exist_ok=True)
    V = {
        "k3": dict(),
        "k3_st": dict(stamps=True),
        "k3_bk2_st": dict(stamps=True, bk=((16, 100), (4, 24), (0, 2))),
        "k3_bk3_st": dict(stamps=True, bk=((32, 32), (8, 8), (0, 0))),
        "k3_nocl_st": dict(stamps=True, noclean=True),
    }
    for n, kw in V.items():
        open(f"exp/{n}.s", "w").write(gen(**kw))
    print(" ".join(f"exp/{n}.s" for n in V)); print(", ".join(f'"exp/{n}.s"' for n in V))
    if len(sys.argv) > 1 and sys.argv[1] == "install":
        open(f"cdna_kernels/{NAME}.s", "w").write(gen())
```

```python
import sys, math, os, struct
NAME = "concat_heads__gqa_block_cached__gqa_block_cached__decode"
WS_BYTES = 553656320
STAMP_OFF = WS_BYTES - (1 << 20)
WS_Q = 0
WS_E = 512 << 10
WS_CNT = 576 << 10
CNT_STRIDE = 4352
WS_H1 = 1 << 20
WS_ML = WS_H1 + (256 << 10)
WS_H2 = 2 << 20
WS_USED = 3 << 20
L_FLAG = 0
F_LAND, F_END, F_QCNT, F_QRDY, F_WDONE, F_FREE = 0, 4, 8, 12, 16, 24
L_ML = 64
L_QF = 512
L_QP = 1536
L_SLAB = 3584
SLAB_STRIDE = 2176
HEAD_STRIDE = 528
L_RING = 12288

def f32bits(x):
    return struct.unpack("<I", struct.pack("<f", x))[0]

HEADER = """; Fused dual GQA decode (q-proj -> split-K flash decode -> out-proj), single persistent launch.
;             4-7 weight waves (q-proj slice, out-proj slice)"""

def gen(stamps=False, kvflag="nt", wflag="nt", POLL_MAX=200000, R=9, infl=24, grp=4,
        bk=((32, 16), (8, 4), (0, 0)), rbk=((32, 4), (0, 0)), redw=4, nowo=False, nowq=False, qsleep=(48, 12), light=False, NS=120, apos=12, tdelay=32, rdelay=24, onep=True):
    C = 2
    NT = 128
    LDS_BYTES = L_RING + R * 16384
    assert LDS_BYTES <= 163840
    L = []
    e = L.append
    kf = (" " + kvflag) if kvflag else ""
    wf = (" " + wflag) if wflag else ""
    dpp = "row_mask:0xf bank_mask:0xf"
    def Rg(i, n=4): return f"v[{i}:{i+n-1}]"
    def nop(n):
        while n > 0:
            k = min(n, 16); e(f"  s_nop {k-1}"); n -= k
    vLANE, vKOFF, vVOFF, vM, vL = 1, 2, 3, 4, 5
    vT0, vT1, vT2, vT3, vT4, vT5 = 6, 7, 8, 9, 10, 11
    vP = 12; vS = 16; vQ = 24; vO = 40; vVT = 72; vK = 104; vV = 136
    vG, vJ, vZ, vONE, vA = 168, 169, 170, 171, 172
    NV = 176
    sW, sH, sMU, sP, sB, sS = 3, 4, 5, 6, 7, 8
    sTEAM, sTMP, sTMP2, sOFF0, sOFF1, sNEXT, sT, sSLOT = 9, 10, 11, 12, 13, 14, 15, 42
    sFIDX = 43
    sRO0, sRO1 = 15, 43
    sK, sV, sWQ, sWO, sX, sWS, sDBG, sOUT = 44, 48, 52, 56, 60, 64, 68, 72
    sC, sSELLO, sSELHI, sU, sPOLL, sTAG, sFIRST = 76, 77, 78, 79, 80, 81, 82
    sST = 84
    def SR(i): return f"s[{i}:{i+3}]"
    def stamp(i):
        if stamps: e(f"  s_memrealtime s[{sST+2*i}:{sST+2*i+1}]")
    def fin(final=False):
        e("  s_branch L_fin" if (stamps and (final or not light)) else "  s_endpgm")
    def lds_wait(label, addr_v, off, want, sleep=1, pre=None):
        e(f"  s_mov_b32 s{sPOLL}, 0")
        e(f"{label}:")
        e(f"  ds_read_b32 v{vT5}, v{addr_v} offset:{off}")
        e(f"  s_add_u32 s{sPOLL}, s{sPOLL}, 1")
        e("  s_waitcnt lgkmcnt(0)")
        e(f"  v_readfirstlane_b32 s{sTMP}, v{vT5}")
        e(f"  s_cmp_ge_u32 s{sPOLL}, {POLL_MAX}")
        e(f"  s_cbranch_scc1 {label}_ok")
        e(f"  s_cmp_ge_i32 s{sTMP}, {want}")
        e(f"  s_cbranch_scc1 {label}_ok")
        if pre: pre()
        if sleep: e(f"  s_sleep {sleep}")
        e(f"  s_branch {label}")
        e(f"{label}_ok:")

    def backoff(label, loop, bk):
        e(f"  s_bcnt1_i32_b64 s{sTMP}, vcc")
        e("  s_mov_b64 exec, vcc")
        for k, (thr, sl) in enumerate(bk):
            if thr > 0:
                e(f"  s_cmp_le_u32 s{sTMP}, {thr}")
                e(f"  s_cbranch_scc1 {label}_{k}")
            if sl: e(f"  s_sleep {sl}")
            e(f"  s_branch {loop}")
            if thr > 0: e(f"{label}_{k}:")

    e(HEADER)
    e(f"; @launch grid=(256,1,1) block=(512,1,1) lds={LDS_BYTES}")
    e('.amdgcn_target "amdgcn-amd-amdhsa--gfx950"')
    e(".text")
    e(f".globl {NAME}_kernel")
    e(".p2align 8")
    e(f".type {NAME}_kernel,@function")
    e(f"{NAME}_kernel:")
    e("  s_cmp_ge_u32 s2, 256")
    e("  s_cbranch_scc1 L_end")
    if stamps:
        for k in range(2, 16): e(f"  s_mov_b32 s{sST+k}, 0")
    stamp(0)
    e("  s_load_dwordx16 s[16:31], s[0:1], 0")
    e("  s_load_dwordx8 s[32:39], s[0:1], 64")
    e("  s_load_dwordx2 s[40:41], s[0:1], 96")
    e(f"  v_lshrrev_b32 v{vT0}, 6, v0")
    e(f"  v_and_b32 v{vLANE}, 63, v0")
    e(f"  s_and_b32 s{sTMP}, s2, 7")
    e(f"  v_readfirstlane_b32 s{sW}, v{vT0}")
    e(f"  s_lshr_b32 s{sTMP2}, s2, 3")
    e(f"  s_lshr_b32 s{sS}, s{sTMP}, 2")
    e(f"  s_lshl_b32 s{sS}, s{sS}, 1")
    e(f"  s_and_b32 s{sH}, s{sTMP}, 1")
    e(f"  s_add_u32 s{sS}, s{sS}, s{sH}")
    e(f"  s_bfe_u32 s{sH}, s{sTMP2}, 0x20002")
    e(f"  s_lshl_b32 s{sH}, s{sH}, 1")
    e(f"  s_bfe_u32 s{sTMP}, s{sTMP}, 0x10001")
    e(f"  s_add_u32 s{sH}, s{sH}, s{sTMP}")
    e(f"  s_lshr_b32 s{sP}, s{sTMP2}, 4")
    e(f"  s_add_u32 s{sB}, s{sTMP2}, s{sS}")
    e(f"  s_and_b32 s{sB}, s{sB}, 3")
    e(f"  s_lshl_b32 s{sMU}, s{sS}, 2")
    e(f"  s_add_u32 s{sMU}, s{sMU}, s{sB}")
    e(f"  s_lshl_b32 s{sTEAM}, s{sP}, 3")
    e(f"  s_add_u32 s{sTEAM}, s{sTEAM}, s{sH}")
    e(f"  v_lshrrev_b32 v{vG}, 4, v{vLANE}")
    e(f"  v_and_b32 v{vJ}, 15, v{vLANE}")
    e(f"  v_lshlrev_b32 v{vVOFF}, 4, v{vLANE}")
    e(f"  v_and_b32 v{vT1}, 3, v{vLANE}")
    e(f"  v_bfe_u32 v{vT2}, v{vLANE}, 2, 2")
    e(f"  v_mov_b32 v{vZ}, 0")
    e(f"  v_mov_b32 v{vONE}, 1")
    e(f"  s_sub_u32 s{sU}, s{sW}, 4")
    for srd, nb in ((sK, 0x8000000), (sV, 0x8000000), (sWQ, 0 if nowq else 0x400000), (sWO, 0 if nowo else 0x400000), (sX, 4096), (sWS, WS_USED), (sOUT, 8192)):
        e(f"  s_mov_b32 s{srd+2}, {nb}")
        e(f"  s_mov_b32 s{srd+3}, 0x20000")
    e(f"  s_mov_b32 s{sSELLO}, 0x05040100")
    e(f"  s_mov_b32 s{sSELHI}, 0x07060302")
    e(f"  s_mov_b32 s{sC}, {f32bits(128 ** -0.5 * math.log2(math.e)):#x}")
    e(f"  s_cmp_eq_u32 s{sP}, 0")
    e("  s_waitcnt lgkmcnt(0)")
    e(f"  s_cselect_b64 s[{sWQ}:{sWQ+1}], s[22:23], s[32:33]")
    e(f"  s_cselect_b64 s[{sX}:{sX+1}], s[16:17], s[26:27]")
    e(f"  s_cselect_b64 s[{sK}:{sK+1}], s[18:19], s[28:29]")
    e(f"  s_cselect_b64 s[{sV}:{sV+1}], s[20:21], s[30:31]")
    e(f"  s_cselect_b64 s[{sWO}:{sWO+1}], s[24:25], s[34:35]")
    e(f"  s_mov_b64 s[{sWS}:{sWS+1}], s[40:41]")
    e(f"  s_mov_b64 s[{sOUT}:{sOUT+1}], s[36:37]")
    e(f"  s_cmp_ge_u32 s{sW}, 4")
    e("  s_cbranch_scc1 L_wwave")
    e(f"  s_cmp_eq_u32 s{sW}, 0")
    e("  s_cbranch_scc1 L_loader")
    e(f"  s_cmp_eq_u32 s{sW}, 3")
    e("  s_cbranch_scc1 L_helper")
    e("  s_branch L_cons")

    e("L_wwave:")
    e("  s_setprio 2")
    WST = L_RING + (R - 2) * 16384
    e(f"  v_lshrrev_b32 v{vT0}, 2, v{vLANE}")
    e(f"  v_lshlrev_b32 v{vT3}, 4, v{vT1}")
    e(f"  v_lshl_add_u32 v{vT4}, v{vT0}, 13, v{vT3}")
    e(f"  v_lshl_add_u32 v{vKOFF}, v{vT0}, 10, v{vT3}")
    e(f"  s_lshl_b32 s{sTMP}, s{sU}, 20")
    e(f"  s_lshl_b32 s{sTMP2}, s{sH}, 10")
    e(f"  s_add_u32 s{sTMP}, s{sTMP}, s{sTMP2}")
    e(f"  s_lshl_b32 s{sTMP2}, s{sMU}, 6")
    e(f"  s_add_u32 s{sTMP}, s{sTMP}, s{sTMP2}")
    e(f"  s_lshl_b32 s{sSLOT}, s{sU}, 13")
    e(f"  s_add_u32 s{sSLOT}, s{sSLOT}, {WST}")
    for n in range(8):
        e(f"  s_add_u32 m0, s{sSLOT}, {n*1024}")
        if n: e(f"  s_add_u32 s{sTMP}, s{sTMP}, {16*8192}")
        else: e("  s_nop 0")
        e(f"  buffer_load_dwordx4 v{vT4}, {SR(sWQ)}, s{sTMP} offen{wf} lds")
    e(f"  v_lshlrev_b32 v{vT0}, 10, v{vT1}")
    e(f"  v_lshl_add_u32 v{vT0}, v{vT2}, 6, v{vT0}")
    e(f"  v_lshl_add_u32 v{vT0}, v{vG}, 4, v{vT0}")
    e(f"  s_lshl_b32 s{sTMP2}, s{sU}, 8")
    e(f"  buffer_load_dwordx4 {Rg(vQ)}, v{vT0}, {SR(sX)}, s{sTMP2} offen")
    e(f"  s_lshl_b32 s{sTMP2}, s{sP}, 8")
    e(f"  s_add_u32 s{sTMP2}, s{sTMP2}, {WS_E}")
    e(f"  s_load_dword s{sTAG}, s[40:41], s{sTMP2}")
    e("  s_barrier")
    e(f"  v_lshlrev_b32 v{vT3}, 2, v{vJ}")
    e(f"  v_add_u32 v{vT3}, s{sSLOT}, v{vT3}")
    e(f"  v_lshl_add_u32 v{vT0}, v{vG}, 9, v{vT3}")
    e(f"  v_lshl_add_u32 v{vA}, v{vG}, 7, v{vT3}")
    e(f"  v_lshl_add_u32 v{vT4}, v{vG}, 2, v{vJ}")
    e(f"  v_lshlrev_b32 v{vT4}, 5, v{vT4}")
    e(f"  s_lshl_b32 s{sTMP}, s{sU}, 9")
    e(f"  v_add_u32 v{vT4}, s{sTMP}, v{vT4}")
    e(f"  s_lshl_b32 s{sOFF0}, s{sH}, 2")
    e(f"  s_add_u32 s{sOFF0}, s{sOFF0}, s{sB}")
    e(f"  s_lshl_b32 s{sOFF0}, s{sOFF0}, 17")
    e(f"  s_lshl_b32 s{sTMP2}, s{sS}, 8")
    e(f"  s_add_u32 s{sOFF0}, s{sOFF0}, s{sTMP2}")
    e(f"  s_lshl_b32 s{sTMP2}, s{sU}, 6")
    e(f"  s_add_u32 s{sOFF0}, s{sOFF0}, s{sTMP2}")
    e("  s_waitcnt vmcnt(0)")
    stamp(1)
    WR, WE = vK, vV
    for u in range(4):
        for q in range(8):
            e(f"  ds_read_b32 v{WR+8*u+q}, v{vT0} offset:{u*2048+q*64}")
    for u in range(1, 4):
        for k in range(4):
            e(f"  v_mov_b32_dpp v{vQ+4*u+k}, v{vQ+k} row_ror:{16-4*u} {dpp}")
    def perms():
        for u in range(4):
            for x in range(4):
                a, b = WR + 8*u + 2*x, WR + 8*u + 2*x + 1
                e(f"  v_perm_b32 v{WE+8*u+x}, v{b}, v{a}, s{sSELLO}")
                e(f"  v_perm_b32 v{WE+8*u+4+x}, v{b}, v{a}, s{sSELHI}")
    e("  s_waitcnt lgkmcnt(0)")
    for n in range(8):
        e(f"  s_add_u32 m0, s{sSLOT}, {n*1024}")
        if n: e(f"  s_add_u32 s{sOFF0}, s{sOFF0}, {16*1024}")
        else: e("  s_nop 0")
        if n == 0: pos_wo = len(L)
        e(f"  buffer_load_dwordx4 v{vKOFF}, {SR(sWO)}, s{sOFF0} offen{wf} lds")
    wo_block = L[pos_wo-2:]; del L[pos_wo-2:]
    perms()
    nop(2)
    for u in range(4):
        for par in range(2):
            c = "0" if u == 0 else Rg(vS+4*par)
            e(f"  v_mfma_f32_16x16x32_bf16 {Rg(vS+4*par)}, {Rg(WE+8*u+4*par)}, {Rg(vQ+4*u)}, {c}")
    e("  s_mov_b32 exec_lo, 0x000f000f")
    e("  s_mov_b32 exec_hi, 0x000f000f")
    nop(8)
    e(f"  ds_write_b128 v{vT4}, {Rg(vS)} offset:{L_QP}")
    e(f"  ds_write_b128 v{vT4}, {Rg(vS+4)} offset:{L_QP+16}")
    e("  s_mov_b64 exec, 1")
    e(f"  ds_add_u32 v{vZ}, v{vONE} offset:{F_QCNT}")
    e("  s_mov_b64 exec, -1")
    stamp(2)
    L.extend(wo_block)
    e("  s_waitcnt vmcnt(0)")
    for u in range(4):
        for q in range(8):
            e(f"  ds_read_b32 v{WR+8*u+q}, v{vA} offset:{u*2048+(q&3)*512+(q>>2)*64}")
    e("  s_waitcnt lgkmcnt(0)")
    e("  s_mov_b64 exec, 1")
    e(f"  ds_add_u32 v{vZ}, v{vONE} offset:{F_WDONE}")
    e("  s_mov_b64 exec, -1")
    perms()
    stamp(3)
    Bq = vVT; MLr = vVT + 16
    e(f"  v_lshlrev_b32 v{vT0}, 8, v{vJ}")
    e(f"  v_lshl_add_u32 v{vT0}, v{vG}, 4, v{vT0}")
    e(f"  v_lshlrev_b32 v{vT1}, 3, v{vJ}")
    e(f"  s_lshl_b32 s{sTMP}, s{sTEAM}, 2")
    e(f"  s_add_u32 s{sTMP}, s{sTMP}, s{sB}")
    e(f"  s_lshl_b32 s{sOFF0}, s{sTMP}, 12")
    e(f"  s_add_u32 s{sOFF0}, s{sOFF0}, {WS_H1}")
    e(f"  s_lshl_b32 s{sOFF1}, s{sTMP}, 7")
    e(f"  s_add_u32 s{sOFF1}, s{sOFF1}, {WS_ML}")
    Y = vP
    e(f"  s_add_u32 s{sTAG}, s{sTAG}, 0x9e3779b9")
    e(f"  v_mov_b32 v{Y+1}, s{sTAG}")
    e(f"  v_mov_b32 v{Y+3}, s{sTAG}")
    e(f"  v_bfe_u32 v{vA}, v{vLANE}, 1, 1")
    e(f"  v_lshl_add_u32 v{vA}, v{vG}, 1, v{vA}")
    e(f"  v_lshlrev_b32 v{vA}, 12, v{vA}")
    e(f"  v_and_b32 v{vT5}, 1, v{vLANE}")
    e(f"  v_lshl_add_u32 v{vA}, v{vT5}, 6, v{vA}")
    e(f"  v_bfe_u32 v{vT5}, v{vLANE}, 2, 2")
    e(f"  v_lshl_add_u32 v{vA}, v{vT5}, 4, v{vA}")
    e(f"  s_lshl_b32 s{sTMP}, s{sP}, 2")
    e(f"  s_add_u32 s{sTMP}, s{sTMP}, s{sS}")
    e(f"  s_lshl_b32 s{sTMP2}, s{sH}, 2")
    e(f"  s_add_u32 s{sTMP2}, s{sTMP2}, s{sB}")
    e(f"  s_lshl_b32 s{sRO0}, s{sTMP}, 17")
    e(f"  s_add_u32 s{sRO0}, s{sRO0}, {WS_H2}")
    e(f"  s_lshl_b32 s{sNEXT}, s{sU}, 15")
    e(f"  s_add_u32 s{sNEXT}, s{sNEXT}, s{sRO0}")
    e(f"  s_lshl_b32 s{sRO1}, s{sTMP2}, 7")
    e(f"  s_add_u32 s{sNEXT}, s{sNEXT}, s{sRO1}")
    e(f"  s_lshl_b32 s{sRO1}, s{sTMP2}, 12")
    e(f"  s_add_u32 s{sRO0}, s{sRO0}, s{sRO1}")
    e(f"  s_lshl_b32 s{sRO1}, s{sTMP}, 8")
    e(f"  s_and_b32 s{sTMP}, s{sTMP2}, 1")
    e(f"  s_lshl_b32 s{sTMP}, s{sTMP}, 12")
    e(f"  s_add_u32 s{sRO1}, s{sRO1}, s{sTMP}")
    e(f"  s_lshr_b32 s{sTMP}, s{sTMP2}, 1")
    e(f"  s_lshl_b32 s{sTMP}, s{sTMP}, 4")
    e(f"  s_add_u32 s{sRO1}, s{sRO1}, s{sTMP}")
    e(f"  v_and_b32 v{vM}, 3, v{vLANE}")
    e(f"  v_lshlrev_b32 v{vM}, 2, v{vM}")
    e(f"  v_lshl_add_u32 v{vM}, v{vT5}, 11, v{vM}")
    X = vK
    e(f"  s_mov_b32 s{sPOLL}, 0")
    e("  s_waitcnt lgkmcnt(0)")
    e("  s_barrier")
    stamp(6)
    if onep:
        e(f"  v_add_u32 v{vL}, {L_RING}, v{vVOFF}")
        e(f"  s_cmp_lg_u32 s{sW}, {redw}")
        e("  s_cbranch_scc1 L_twait")
    if tdelay: e(f"  s_sleep {tdelay}")
    e("L_tpoll:")
    for u in range(4):
        e(f"  buffer_load_dwordx4 {Rg(Bq+4*u)}, v{vT0}, {SR(sWS)}, s{sOFF0} offen offset:{64*u} sc1")
    e(f"  buffer_load_dwordx2 {Rg(MLr,2)}, v{vT1}, {SR(sWS)}, s{sOFF1} offen sc1")
    e(f"  s_add_u32 s{sPOLL}, s{sPOLL}, 1")
    e("  s_waitcnt vmcnt(0)")
    e(f"  v_max3_u32 v{vT2}, v{Bq}, v{Bq+1}, v{Bq+2}")
    e(f"  v_max3_u32 v{vT3}, v{Bq+3}, v{Bq+4}, v{Bq+5}")
    e(f"  v_max3_u32 v{vT4}, v{Bq+6}, v{Bq+7}, v{Bq+8}")
    e(f"  v_max3_u32 v{vT2}, v{vT2}, v{Bq+9}, v{Bq+10}")
    e(f"  v_max3_u32 v{vT3}, v{vT3}, v{Bq+11}, v{Bq+12}")
    e(f"  v_max3_u32 v{vT4}, v{vT4}, v{Bq+13}, v{Bq+14}")
    e(f"  v_max3_u32 v{vT2}, v{vT2}, v{Bq+15}, v{MLr}")
    e(f"  v_max3_u32 v{vT3}, v{vT3}, v{vT4}, v{MLr+1}")
    e(f"  v_max_u32 v{vT2}, v{vT2}, v{vT3}")
    e(f"  v_cmp_eq_u32 vcc, -1, v{vT2}")
    e(f"  s_cmp_ge_u32 s{sPOLL}, {POLL_MAX}")
    e("  s_cbranch_scc1 L_tok")
    e("  s_cbranch_vccz L_tok")
    backoff("L_tbk", "L_tpoll", bk)
    e("L_tok:")
    e("  s_mov_b64 exec, -1")
    stamp(5)
    if onep:
        for u in range(4):
            e(f"  ds_write_b128 v{vL}, {Rg(Bq+4*u)} offset:{1024*u}")
        e(f"  ds_write_b64 v{vL}, {Rg(MLr,2)} offset:4096")
        e("  s_waitcnt lgkmcnt(0)")
        e("  s_barrier")
        e("  s_branch L_tgo")
        e("L_twait:")
        e("  s_barrier")
        for u in range(4):
            e(f"  ds_read_b128 {Rg(Bq+4*u)}, v{vL} offset:{1024*u}")
        e(f"  ds_read_b64 {Rg(MLr,2)}, v{vL} offset:4096")
        e("  s_waitcnt lgkmcnt(0)")
        e("L_tgo:")
    for u in range(4):
        for par in range(2):
            c = "0" if u == 0 else Rg(vS+4*par)
            e(f"  v_mfma_f32_16x16x32_bf16 {Rg(vS+4*par)}, {Rg(WE+8*u+4*par)}, {Rg(Bq+4*u)}, {c}")
    e(f"  v_max_f32_dpp v{vT2}, v{MLr}, v{MLr} row_ror:4 {dpp}")
    nop(2)
    e(f"  v_max_f32_dpp v{vT2}, v{vT2}, v{vT2} row_ror:8 {dpp}")
    e(f"  v_sub_f32 v{vT2}, v{MLr}, v{vT2}")
    e(f"  v_exp_f32 v{vT2}, v{vT2}")
    nop(1)
    e(f"  v_mul_f32 v{vT2}, v{vT2}, v{MLr+1}")
    nop(2)
    e(f"  v_add_f32_dpp v{vT3}, v{vT2}, v{vT2} row_ror:4 {dpp}")
    nop(2)
    e(f"  v_add_f32_dpp v{vT3}, v{vT3}, v{vT3} row_ror:8 {dpp}")
    e(f"  v_rcp_f32 v{vT3}, v{vT3}")
    nop(1)
    e(f"  v_mul_f32 v{vT2}, v{vT2}, v{vT3}")
    for k in range(8):
        e(f"  v_mul_f32 v{vS+k}, v{vS+k}, v{vT2}")
    for k in range(8):
        e(f"  v_add_f32_dpp v{vS+k}, v{vS+k}, v{vS+k} row_ror:4 {dpp}")
    for k in range(8):
        e(f"  v_add_f32_dpp v{Y+2*(k>>2)}, v{vS+k}, v{vS+k} row_ror:8 row_mask:0xf bank_mask:{1 << (k & 3):#x}")
    e(f"  buffer_store_dwordx4 {Rg(Y)}, v{vA}, {SR(sWS)}, s{sNEXT} offen sc1")
    e(f"  s_cmp_lg_u32 s{sW}, {redw}")
    e("  s_cbranch_scc1 " + ("L_fin" if (stamps and not light) else "L_end"))
    e(f"  s_mov_b32 s{sPOLL}, 0")
    if rdelay: e(f"  s_sleep {rdelay}")
    e("L_rpoll:")
    for k in range(4):
        e(f"  buffer_load_dwordx4 {Rg(X+4*k)}, v{vVOFF}, {SR(sWS)}, s{sRO0} offen offset:{1024*k} sc1")
    e(f"  s_add_u32 s{sPOLL}, s{sPOLL}, 1")
    e("  s_waitcnt vmcnt(0)")
    for k in range(8):
        e(f"  v_xor_b32 v{X+16+k}, s{sTAG}, v{X+2*k+1}")
    e(f"  v_or3_b32 v{vT2}, v{X+16}, v{X+17}, v{X+18}")
    e(f"  v_or3_b32 v{vT3}, v{X+19}, v{X+20}, v{X+21}")
    e(f"  v_or3_b32 v{vT2}, v{vT2}, v{X+22}, v{X+23}")
    e(f"  v_or_b32 v{vT2}, v{vT2}, v{vT3}")
    e(f"  v_cmp_ne_u32 vcc, 0, v{vT2}")
    e(f"  s_cmp_ge_u32 s{sPOLL}, {POLL_MAX}")
    e("  s_cbranch_scc1 L_rok")
    e("  s_cbranch_vccz L_rok")
    backoff("L_rbk", "L_rpoll", rbk)
    e("L_rok:")
    e("  s_mov_b64 exec, -1")
    stamp(4)
    for c in (0, 2):
        e(f"  v_add_f32 v{X+c}, v{X+c}, v{X+4+c}")
        e(f"  v_add_f32 v{X+8+c}, v{X+8+c}, v{X+12+c}")
    for c in (0, 2):
        e(f"  v_add_f32 v{X+c}, v{X+c}, v{X+8+c}")
    nop(1)
    for c in (0, 2):
        e(f"  v_add_f32_dpp v{X+c}, v{X+c}, v{X+c} row_ror:8 {dpp}")
    for op in ("v_permlane16_swap_b32", "v_permlane32_swap_b32"):
        for c in (0, 2):
            e(f"  v_mov_b32 v{X+4+c}, v{X+c}")
        nop(2)
        for c in (0, 2):
            e(f"  {op} v{X+c}, v{X+4+c}")
        nop(1)
        for c in (0, 2):
            e(f"  v_add_f32 v{X+c}, v{X+c}, v{X+4+c}")
    e(f"  v_cvt_pk_bf16_f32 v{vT2}, v{X}, v{X+2}")
    e("  s_mov_b64 exec, 0xff")
    e(f"  buffer_store_dword v{vT2}, v{vM}, {SR(sOUT)}, s{sRO1} offen")
    e(f"  s_or_b32 s{sTMP}, s{sH}, s{sMU}")
    e(f"  s_cmp_lg_u32 s{sTMP}, 0")
    e("  s_cbranch_scc1 L_noep")
    e("  s_mov_b64 exec, 1")
    e(f"  s_lshl_b32 s{sTMP2}, s{sP}, 8")
    e(f"  s_add_u32 s{sTMP2}, s{sTMP2}, {WS_E}")
    e(f"  buffer_store_dword v{Y+1}, v{vZ}, {SR(sWS)}, s{sTMP2} offen")
    e("L_noep:")
    if stamps: e("  s_waitcnt vmcnt(0)")
    fin(True)

    e("L_loader:")
    e("  s_setprio 1")
    e(f"  v_lshlrev_b32 v{vKOFF}, 10, v{vT1}")
    e(f"  v_lshl_add_u32 v{vKOFF}, v{vT2}, 8, v{vKOFF}")
    e(f"  v_lshl_add_u32 v{vKOFF}, v{vG}, 4, v{vKOFF}")
    e(f"  s_lshl_b32 s{sNEXT}, s{sB}, 3")
    e(f"  s_add_u32 s{sNEXT}, s{sNEXT}, s{sH}")
    e(f"  s_lshl_b32 s{sNEXT}, s{sNEXT}, 2")
    e(f"  s_add_u32 s{sNEXT}, s{sNEXT}, s{sS}")
    e(f"  s_lshl_b32 s{sNEXT}, s{sNEXT}, 20")
    e(f"  s_mov_b32 s{sSLOT}, {L_RING}")
    e(f"  s_mov_b32 s{sT}, 0")
    e(f"  s_mov_b32 s{sFIDX}, {4 * ((-R) % C)}")
    ND = 4 * (NT - NS)
    vC = [vS, vS + 1]
    sGB, sCO = sTAG, sFIRST
    e(f"  s_andn2_b32 s{sGB}, s{sNEXT}, 0x300000")
    e(f"  s_add_u32 s{sGB}, s{sGB}, {NS*8192}")
    e(f"  s_lshl_b32 s{sCO}, s{sTEAM}, 2")
    e(f"  s_add_u32 s{sCO}, s{sCO}, s{sB}")
    e(f"  s_mul_i32 s{sCO}, s{sCO}, {CNT_STRIDE}")
    e(f"  s_add_u32 s{sCO}, s{sCO}, {WS_CNT}")
    def publish(expr_add):
        e(f"  s_add_i32 s{sTMP2}, s{sT}, {expr_add}")
        e(f"  v_mov_b32 v{vT0}, s{sTMP2}")
        e("  s_mov_b64 exec, 1")
        e(f"  ds_max_i32 v{vZ}, v{vT0} offset:{F_LAND}")
        e("  s_mov_b64 exec, -1")
    W_ = infl - grp
    pubpos = None
    for jj in range(0, 16, grp):
        if (W_ - jj) % 16 == 0: pubpos = (jj, (W_ - jj) // 16)
    assert pubpos is not None
    def issue_tile(first=False, claim=None):
        e(f"  s_add_u32 s{sOFF1}, s{sNEXT}, 4096")
        for j in range(16):
            if j % grp == 0 and not first:
                e(f"  s_waitcnt vmcnt({W_})")
                if j == pubpos[0]:
                    publish(-pubpos[1])
            if claim is not None and j == apos:
                e(f"  v_mov_b32 v{claim}, 1")
                e("  s_mov_b64 exec, 1")
                e(f"  buffer_atomic_add v{claim}, v{vZ}, {SR(sWS)}, s{sCO} offen sc0 sc1")
                e("  s_mov_b64 exec, -1")
            isK = j < 8; jj = j % 8; T, u = jj // 4, jj % 4
            so = f"s{sNEXT}" if T == 0 else f"s{sOFF1}"
            if isK:
                e(f"  s_add_u32 m0, s{sSLOT}, {j*1024 - u*64}")
                e("  s_nop 0")
                e(f"  buffer_load_dwordx4 v{vKOFF}, {SR(sK)}, {so} offen offset:{u*64}{kf} lds")
            else:
                if u == 0:
                    e(f"  s_add_u32 m0, s{sSLOT}, {j*1024}")
                    e("  s_nop 0")
                e(f"  buffer_load_dwordx4 v{vVOFF}, {SR(sV)}, {so} offen offset:{u*1024}{kf} lds")
        e(f"  s_add_u32 s{sNEXT}, s{sNEXT}, 8192")
        e(f"  s_add_u32 s{sSLOT}, s{sSLOT}, 16384")
        e(f"  s_cmp_ge_u32 s{sSLOT}, {LDS_BYTES}")
        e(f"  s_cselect_b32 s{sSLOT}, {L_RING}, s{sSLOT}")
        e(f"  s_xor_b32 s{sFIDX}, s{sFIDX}, 4")
        e(f"  s_add_u32 s{sT}, s{sT}, 1")
    def drain_pub():
        e("  s_waitcnt vmcnt(0)")
        publish(0)
    def free_wait(tag):
        e(f"  v_mov_b32 v{vA}, s{sFIDX}")
        e(f"  s_sub_u32 s{sOFF0}, s{sT}, {R-1}")
        lds_wait(f"L_free{tag}", vA, F_FREE, f"s{sOFF0}", pre=drain_pub)
    issue_tile(first=True)
    e("  s_barrier")
    stamp(1)
    e("L_lloop:")
    if stamps:
        for k, X_ in enumerate((16, 64)):
            e(f"  s_cmp_lg_u32 s{sT}, {X_}")
            e(f"  s_cbranch_scc1 L_ps{k}")
            stamp(2 + k)
            e(f"L_ps{k}:")
    e(f"  s_cmp_lg_u32 s{sT}, {R-2}")
    e("  s_cbranch_scc1 L_nowd")
    lds_wait("L_wd", vZ, F_WDONE, 4, pre=drain_pub)
    e("L_nowd:")
    e(f"  s_cmp_lt_u32 s{sT}, {R}")
    e("  s_cbranch_scc1 L_isfree")
    free_wait("a")
    e("L_isfree:")
    issue_tile()
    e(f"  s_cmp_lt_u32 s{sT}, {NS - 2 if ND else NS}")
    e("  s_cbranch_scc1 L_lloop")
    if ND:
        for k in range(2):
            free_wait(f"b{k}")
            issue_tile(claim=vC[k])
        stamp(5)
        need = min(W_, (16 - apos) + 17)
        e("L_dloop:")
        for k in range(2):
            e(f"  s_waitcnt vmcnt({need})")
            e(f"  v_readfirstlane_b32 s{sNEXT}, v{vC[k]}")
            e(f"  s_cmp_ge_u32 s{sT}, {NS + ND}")
            e("  s_cbranch_scc1 L_lend")
            e(f"  s_cmp_ge_u32 s{sNEXT}, {ND}")
            e("  s_cbranch_scc1 L_lend")
            e(f"  s_and_b32 s{sTMP}, s{sNEXT}, 3")
            e(f"  s_lshl_b32 s{sTMP}, s{sTMP}, 7")
            e(f"  s_lshr_b32 s{sNEXT}, s{sNEXT}, 2")
            e(f"  s_add_u32 s{sNEXT}, s{sNEXT}, s{sTMP}")
            e(f"  s_lshl_b32 s{sNEXT}, s{sNEXT}, 13")
            e(f"  s_add_u32 s{sNEXT}, s{sNEXT}, s{sGB}")
            free_wait(f"c{k}")
            issue_tile(claim=vC[k])
        e("  s_branch L_dloop")
    e("L_lend:")
    e(f"  v_mov_b32 v{vT1}, s{sT}")
    e(f"  ds_write_b32 v{vZ}, v{vT1} offset:{F_END}")
    e("  s_waitcnt vmcnt(16)")
    publish(-1)
    e("  s_waitcnt vmcnt(0)")
    publish(0)
    stamp(4)
    e("  s_waitcnt lgkmcnt(0)")
    e("  s_barrier")
    stamp(6)
    fin()

    e("L_helper:")
    e("  s_setprio 3")
    e(f"  s_lshl_b32 s{sTMP2}, s{sP}, 8")
    e(f"  s_add_u32 s{sTMP2}, s{sTMP2}, {WS_E}")
    e(f"  s_load_dword s{sTAG}, s[40:41], s{sTMP2}")
    e(f"  v_lshlrev_b32 v{vT4}, 12, v{vG}")
    e(f"  v_lshl_add_u32 v{vT4}, v{vJ}, 4, v{vT4}")
    e(f"  v_lshlrev_b32 v{vA}, 7, v{vG}")
    e(f"  s_lshl_b32 s{sRO0}, s{sMU}, 8")
    e(f"  s_lshl_b32 s{sTMP2}, s{sTEAM}, 14")
    e(f"  s_add_u32 s{sRO0}, s{sRO0}, s{sTMP2}")
    e(f"  s_add_u32 s{sRO0}, s{sRO0}, {WS_H1}")
    e(f"  s_lshl_b32 s{sRO1}, s{sMU}, 3")
    e(f"  s_lshl_b32 s{sTMP2}, s{sTEAM}, 9")
    e(f"  s_add_u32 s{sRO1}, s{sRO1}, s{sTMP2}")
    e(f"  s_add_u32 s{sRO1}, s{sRO1}, {WS_ML}")
    for k in range(4): e(f"  v_mov_b32 v{vV+k}, -1")
    e(f"  buffer_store_dwordx4 {Rg(vV)}, v{vT4}, {SR(sWS)}, s{sRO0} offen sc1")
    e("  s_mov_b32 exec_lo, 0x00010001")
    e("  s_mov_b32 exec_hi, 0x00010001")
    e(f"  buffer_store_dwordx2 {Rg(vV,2)}, v{vA}, {SR(sWS)}, s{sRO1} offen sc1")
    e(f"  s_cmp_lg_u32 s{sS}, 0")
    e("  s_cbranch_scc1 L_nocnt")
    e("  s_mov_b64 exec, 1")
    e(f"  s_lshl_b32 s{sTMP}, s{sTEAM}, 2")
    e(f"  s_add_u32 s{sTMP}, s{sTMP}, s{sB}")
    e(f"  s_mul_i32 s{sTMP}, s{sTMP}, {CNT_STRIDE}")
    e(f"  s_add_u32 s{sTMP}, s{sTMP}, {WS_CNT}")
    e(f"  buffer_store_dword v{vZ}, v{vZ}, {SR(sWS)}, s{sTMP} offen sc1")
    e("L_nocnt:")
    e("  s_mov_b64 exec, -1")
    e("  s_barrier")
    e(f"  v_lshl_add_u32 v{vT0}, v{vT2}, 2, v{vG}")
    e(f"  v_lshlrev_b32 v{vT0}, 5, v{vT0}")
    e(f"  v_lshl_add_u32 v{vT0}, v{vT1}, 2, v{vT0}")
    e(f"  v_lshlrev_b32 v{vT2}, 14, v{vG}")
    e(f"  v_lshl_add_u32 v{vT2}, v{vJ}, 3, v{vT2}")
    e(f"  s_lshl_b32 s{sOFF0}, s{sP}, 16")
    e(f"  s_lshl_b32 s{sTMP2}, s{sH}, 11")
    e(f"  s_add_u32 s{sOFF0}, s{sOFF0}, s{sTMP2}")
    e(f"  s_lshl_b32 s{sOFF1}, s{sMU}, 7")
    e(f"  s_add_u32 s{sOFF1}, s{sOFF1}, s{sOFF0}")
    e(f"  s_lshl_b32 s{sTMP2}, s{sB}, 14")
    e(f"  s_add_u32 s{sOFF0}, s{sOFF0}, s{sTMP2}")
    e("  s_waitcnt lgkmcnt(0)")
    e(f"  s_add_u32 s{sTAG}, s{sTAG}, 0x9e3779b9")
    e(f"  v_mov_b32 v{vP+1}, s{sTAG}")
    e(f"  v_mov_b32 v{vP+3}, s{sTAG}")
    lds_wait("L_qcnt", vZ, F_QCNT, 4, sleep=0)
    stamp(1)
    for w in range(4):
        e(f"  ds_read_b32 v{vVT+2*w}, v{vT0} offset:{L_QP+w*512}")
        e(f"  ds_read_b32 v{vVT+2*w+1}, v{vT0} offset:{L_QP+w*512+16}")
    e("  s_waitcnt lgkmcnt(0)")
    for st in (1, 2):
        for half in range(2):
            for w in range(0, 4, 2*st):
                e(f"  v_add_f32 v{vVT+2*w+half}, v{vVT+2*w+half}, v{vVT+2*(w+st)+half}")
    e(f"  v_cvt_pk_bf16_f32 v{vP}, v{vVT}, v{vVT+1}")
    nop(2)
    e(f"  v_mov_b32_dpp v{vP+2}, v{vP} quad_perm:[1,1,3,3] {dpp}")
    e("  s_mov_b32 exec_lo, 0x55555555")
    e("  s_mov_b32 exec_hi, 0x55555555")
    e("  s_waitcnt vmcnt(0)")
    e(f"  buffer_store_dwordx4 {Rg(vP)}, v{vT2}, {SR(sWS)}, s{sOFF1} offen sc1")
    e("  s_mov_b64 exec, -1")
    stamp(2)
    QX = vK
    e(f"  s_mov_b32 s{sPOLL}, 0")
    if qsleep[0]: e(f"  s_sleep {qsleep[0]}")
    e("L_qpoll:")
    e(f"  buffer_load_dwordx4 {Rg(QX)}, v{vVOFF}, {SR(sWS)}, s{sOFF0} offen sc1")
    e(f"  buffer_load_dwordx4 {Rg(QX+4)}, v{vVOFF}, {SR(sWS)}, s{sOFF0} offen offset:1024 sc1")
    e(f"  s_add_u32 s{sPOLL}, s{sPOLL}, 1")
    e("  s_waitcnt vmcnt(0)")
    e(f"  v_xor_b32 v{vT3}, s{sTAG}, v{QX+1}")
    e(f"  v_xor_b32 v{vT2}, s{sTAG}, v{QX+3}")
    e(f"  v_xor_b32 v{vT5}, s{sTAG}, v{QX+5}")
    e(f"  v_xor_b32 v{vT1}, s{sTAG}, v{QX+7}")
    e(f"  v_or3_b32 v{vT3}, v{vT3}, v{vT2}, v{vT5}")
    e(f"  v_or_b32 v{vT3}, v{vT3}, v{vT1}")
    e(f"  v_cmp_ne_u32 vcc, 0, v{vT3}")
    e(f"  s_cmp_ge_u32 s{sPOLL}, {POLL_MAX}")
    e("  s_cbranch_scc1 L_qok")
    e("  s_cbranch_vccz L_qok")
    e("  s_mov_b64 exec, vcc")
    if qsleep[1]: e(f"  s_sleep {qsleep[1]}")
    e("  s_branch L_qpoll")
    e("L_qok:")
    e("  s_mov_b64 exec, -1")
    stamp(3)
    e(f"  v_lshlrev_b32 v{vT0}, 3, v{vLANE}")
    e(f"  v_add_u32 v{vT0}, {L_QF}, v{vT0}")
    e(f"  ds_write2_b32 v{vT0}, v{QX}, v{QX+2} offset0:0 offset1:1")
    e(f"  ds_write2_b32 v{vT0}, v{QX+4}, v{QX+6} offset0:128 offset1:129")
    e(f"  ds_write_b32 v{vZ}, v{vONE} offset:{F_QRDY}")
    A = vK; ML = vVT
    e(f"  v_lshlrev_b32 v{vT0}, 5, v{vLANE}")
    e(f"  v_lshl_add_u32 v{vT0}, v{vG}, 4, v{vT0}")
    e(f"  v_lshlrev_b32 v{vT1}, 4, v{vG}")
    e("  s_waitcnt lgkmcnt(0)")
    e("  s_barrier")
    stamp(6)
    e(f"  ds_read_b128 {Rg(ML)}, v{vT1} offset:{L_ML}")
    for w in range(C):
        e(f"  ds_read_b128 {Rg(A+8*w)}, v{vT0} offset:{L_SLAB+w*SLAB_STRIDE}")
        e(f"  ds_read_b128 {Rg(A+8*w+4)}, v{vT0} offset:{L_SLAB+w*SLAB_STRIDE+16}")
    e(f"  s_waitcnt lgkmcnt({2*C})")
    e(f"  v_max_f32 v{vM}, v{ML}, v{ML+2}")
    for w in range(C):
        e(f"  v_sub_f32 v{ML+2*w}, v{ML+2*w}, v{vM}")
    for w in range(C):
        e(f"  v_mul_f32 v{ML+2*w}, s{sC}, v{ML+2*w}")
    for w in range(C):
        e(f"  v_exp_f32 v{ML+2*w}, v{ML+2*w}")
    e(f"  v_mul_f32 v{vM}, s{sC}, v{vM}")
    e(f"  v_mul_f32 v{vL}, v{ML}, v{ML+1}")
    e(f"  v_fmac_f32 v{vL}, v{ML+2}, v{ML+3}")
    e(f"  v_rcp_f32 v{vT2}, v{vL}")
    e(f"  v_min_u32 v{vM}, -2, v{vM}")
    e(f"  v_mul_f32 v{ML}, v{ML}, v{vT2}")
    e(f"  v_mul_f32 v{ML+2}, v{ML+2}, v{vT2}")
    e(f"  v_min_u32 v{vL}, -2, v{vL}")
    e("  s_waitcnt lgkmcnt(0)")
    for k in range(8):
        e(f"  v_mul_f32 v{A+k}, v{A+k}, v{ML}")
    for k in range(8):
        e(f"  v_fmac_f32 v{A+k}, v{A+8+k}, v{ML+2}")
    for x in range(4):
        e(f"  v_cvt_pk_bf16_f32 v{vP+x}, v{A+2*x}, v{A+2*x+1}")
    for x in range(4):
        e(f"  v_min_u32 v{vP+x}, -2, v{vP+x}")
    e(f"  buffer_store_dwordx4 {Rg(vP)}, v{vT4}, {SR(sWS)}, s{sRO0} offen sc1")
    e("  s_mov_b32 exec_lo, 0x00010001")
    e("  s_mov_b32 exec_hi, 0x00010001")
    e(f"  buffer_store_dwordx2 {Rg(vM,2)}, v{vA}, {SR(sWS)}, s{sRO1} offen sc1")
    fin()

    e("L_cons:")
    e(f"  v_lshlrev_b32 v{vT0}, 2, v{vJ}")
    e(f"  ds_write_b32 v{vT0}, v{vZ} offset:{L_FLAG}")
    e(f"  s_sub_u32 s{sT}, s{sW}, 1")
    e(f"  s_lshl_b32 s{sSLOT}, s{sT}, 14")
    e(f"  s_add_u32 s{sSLOT}, s{sSLOT}, {L_RING}")
    e(f"  s_lshl_b32 s{sTMP}, s{sT}, 2")
    e(f"  v_mov_b32 v{vKOFF}, s{sTMP}")
    e(f"  s_mov_b32 s{sFIRST}, 1")
    e("  s_waitcnt lgkmcnt(0)")
    e("  s_barrier")
    e(f"  v_mov_b32 v{vM}, {f32bits(-1e30):#x}")
    e(f"  v_mov_b32 v{vL}, 0")
    for k in range(32): e(f"  v_mov_b32 v{vO+k}, 0")
    e("L_cloop:")
    e(f"  s_add_u32 s{sOFF0}, s{sT}, 1")
    e(f"  v_add_u32 v{vA}, s{sSLOT}, v{vVOFF}")
    e(f"  s_mov_b32 s{sPOLL}, 0")
    e("L_land:")
    e(f"  ds_read_b64 {Rg(vT4,2)}, v{vZ} offset:{F_LAND}")
    e(f"  s_add_u32 s{sPOLL}, s{sPOLL}, 1")
    e("  s_waitcnt lgkmcnt(0)")
    e(f"  v_readfirstlane_b32 s{sTMP}, v{vT4}")
    e(f"  v_readfirstlane_b32 s{sTMP2}, v{vT5}")
    e(f"  s_cmp_ge_u32 s{sPOLL}, {POLL_MAX}")
    e("  s_cbranch_scc1 L_cdone")
    e(f"  s_cmp_ge_i32 s{sTMP}, s{sOFF0}")
    e("  s_cbranch_scc1 L_land_ok")
    e(f"  s_sub_u32 s{sTMP2}, s{sTMP2}, 1")
    e(f"  s_cmp_lt_u32 s{sTMP2}, s{sT}")
    e("  s_cbranch_scc1 L_cdone")
    e("  s_sleep 1")
    e("  s_branch L_land")
    e("L_land_ok:")
    for j in range(16):
        e(f"  ds_read_b128 {Rg(vK+4*j)}, v{vA} offset:{1024*j}")
    e(f"  v_mov_b32 v{vT0}, s{sOFF0}")
    e("  s_waitcnt lgkmcnt(0)")
    e(f"  ds_write_b32 v{vKOFF}, v{vT0} offset:{F_FREE}")
    e(f"  s_cmp_eq_u32 s{sFIRST}, 0")
    e("  s_cbranch_scc1 L_haveq")
    e(f"  s_mov_b32 s{sFIRST}, 0")
    stamp(1)
    lds_wait("L_qwait", vZ, F_QRDY, 1)
    e(f"  v_lshlrev_b32 v{vT0}, 8, v{vLANE}")
    e(f"  v_and_b32 v{vT0}, 0x300, v{vT0}")
    e(f"  v_lshl_add_u32 v{vT0}, v{vG}, 4, v{vT0}")
    for u in range(4):
        e(f"  ds_read_b128 {Rg(vQ+4*u)}, v{vT0} offset:{L_QF+64*u}")
    e("  s_waitcnt lgkmcnt(0)")
    stamp(2)
    e("L_haveq:")
    for u in range(4):
        for T in range(2):
            c = "0" if u == 0 else Rg(vS+4*T)
            e(f"  v_mfma_f32_16x16x32_bf16 {Rg(vS+4*T)}, {Rg(vK+4*(4*T+u))}, {Rg(vQ+4*u)}, {c}")
    for d in range(8):
        w_, sel = d >> 1, (sSELHI if d & 1 else sSELLO)
        for x in range(4):
            e(f"  v_perm_b32 v{vVT+4*d+x}, v{vV+4*(2*x+1)+w_}, v{vV+4*(2*x)+w_}, s{sel}")
    e(f"  v_max3_f32 v{vT0}, v{vS}, v{vS+1}, v{vS+2}")
    e(f"  v_max3_f32 v{vT1}, v{vS+3}, v{vS+4}, v{vS+5}")
    e(f"  v_max3_f32 v{vT0}, v{vT0}, v{vS+6}, v{vS+7}")
    e(f"  v_max3_f32 v{vT0}, v{vT0}, v{vT1}, v{vM}")
    e(f"  v_mov_b32 v{vT1}, v{vT0}")
    nop(2)
    e(f"  v_permlane16_swap_b32 v{vT0}, v{vT1}")
    nop(1)
    e(f"  v_max_f32 v{vT0}, v{vT0}, v{vT1}")
    e(f"  v_mov_b32 v{vT1}, v{vT0}")
    nop(2)
    e(f"  v_permlane32_swap_b32 v{vT0}, v{vT1}")
    nop(1)
    e(f"  v_max_f32 v{vT0}, v{vT0}, v{vT1}")
    e(f"  v_cmp_neq_f32 vcc, v{vT0}, v{vM}")
    e(f"  v_sub_f32 v{vT2}, v{vM}, v{vT0}")
    e(f"  v_mul_f32 v{vT2}, s{sC}, v{vT2}")
    e(f"  v_exp_f32 v{vT2}, v{vT2}")
    e(f"  v_mov_b32 v{vM}, v{vT0}")
    e(f"  v_mul_f32 v{vT3}, s{sC}, v{vT0}")
    for k in range(8):
        e(f"  v_fma_f32 v{vS+k}, v{vS+k}, s{sC}, -v{vT3}")
    for k in range(8):
        e(f"  v_exp_f32 v{vS+k}, v{vS+k}")
    e(f"  v_mul_f32 v{vL}, v{vL}, v{vT2}")
    for x in range(4):
        e(f"  v_cvt_pk_bf16_f32 v{vP+x}, v{vS+2*x}, v{vS+2*x+1}")
    e(f"  v_add_f32 v{vT0}, v{vS}, v{vS+1}")
    e(f"  v_add_f32 v{vT1}, v{vS+2}, v{vS+3}")
    e(f"  v_add_f32 v{vT3}, v{vS+4}, v{vS+5}")
    e(f"  v_add_f32 v{vT4}, v{vS+6}, v{vS+7}")
    e(f"  v_add_f32 v{vT0}, v{vT0}, v{vT1}")
    e(f"  v_add_f32 v{vT3}, v{vT3}, v{vT4}")
    e(f"  v_add_f32 v{vL}, v{vL}, v{vT0}")
    e(f"  v_add_f32 v{vL}, v{vL}, v{vT3}")
    e("  s_cbranch_vccz L_nores")
    for k in range(32):
        e(f"  v_mul_f32 v{vO+k}, v{vO+k}, v{vT2}")
    nop(2)
    e("L_nores:")
    for d in range(8):
        e(f"  v_mfma_f32_16x16x32_bf16 {Rg(vO+4*d)}, {Rg(vVT+4*d)}, {Rg(vP)}, {Rg(vO+4*d)}")
    e(f"  s_add_u32 s{sSLOT}, s{sSLOT}, {C*16384}")
    e(f"  s_cmp_ge_u32 s{sSLOT}, {LDS_BYTES}")
    e(f"  s_cselect_b32 s{sTMP}, {R*16384}, 0")
    e(f"  s_sub_u32 s{sSLOT}, s{sSLOT}, s{sTMP}")
    e(f"  s_add_u32 s{sT}, s{sT}, {C}")
    e("  s_branch L_cloop")
    e("L_cdone:")
    e(f"  v_mov_b32 v{vT1}, v{vL}")
    e(f"  v_mul_u32_u24 v{vT0}, {HEAD_STRIDE}, v{vJ}")
    e(f"  v_lshl_add_u32 v{vT0}, v{vG}, 7, v{vT0}")
    e(f"  v_permlane16_swap_b32 v{vL}, v{vT1}")
    e(f"  s_sub_u32 s{sTMP2}, s{sW}, 1")
    e(f"  v_add_f32 v{vL}, v{vL}, v{vT1}")
    e(f"  v_mov_b32 v{vT1}, v{vL}")
    e(f"  s_mul_i32 s{sTMP}, s{sTMP2}, {SLAB_STRIDE}")
    e(f"  v_add_u32 v{vT0}, s{sTMP}, v{vT0}")
    e(f"  v_permlane32_swap_b32 v{vL}, v{vT1}")
    e(f"  s_lshl_b32 s{sTMP}, s{sTMP2}, 3")
    e(f"  v_add_f32 v{vL}, v{vL}, v{vT1}")
    e(f"  v_lshlrev_b32 v{vT1}, 4, v{vJ}")
    e(f"  v_add_u32 v{vT1}, s{sTMP}, v{vT1}")
    e("  s_mov_b32 exec_lo, 0x000f000f")
    e("  s_mov_b32 exec_hi, 0x000f000f")
    for d in range(8):
        e(f"  ds_write_b128 v{vT0}, {Rg(vO+4*d)} offset:{L_SLAB+16*d}")
    e("  s_mov_b64 exec, 15")
    e(f"  ds_write_b64 v{vT1}, {Rg(vM,2)} offset:{L_ML}")
    stamp(4)
    e("  s_waitcnt lgkmcnt(0)")
    e("  s_barrier")
    stamp(6)
    if stamps:
        if light: e("  s_endpgm")
        e("L_fin:")
        stamp(7)
        e("  s_waitcnt lgkmcnt(0)")
        e(f"  s_mov_b32 s{sWS+2}, {WS_BYTES}")
        e(f"  s_lshl_b32 s{sTMP}, s2, 3")
        e(f"  s_add_u32 s{sTMP}, s{sTMP}, s{sW}")
        e(f"  s_lshl_b32 s{sTMP}, s{sTMP}, 6")
        e(f"  s_add_u32 s{sTMP}, s{sTMP}, {STAMP_OFF}")
        e("  s_mov_b64 exec, 1")
        for k in range(16): e(f"  v_mov_b32 v{vO+k}, s{sST+k}")
        for k in range(4): e(f"  buffer_store_dwordx4 {Rg(vO+4*k)}, v{vZ}, {SR(sWS)}, s{sTMP} offen offset:{16*k}")
    e("L_end:")
    e("  s_endpgm")
    e('.section .rodata,"a"')
    e(".p2align 6")
    e(f".amdhsa_kernel {NAME}_kernel")
    e(f"  .amdhsa_next_free_vgpr {NV}")
    e("  .amdhsa_next_free_sgpr 102")
    e(f"  .amdhsa_accum_offset {(NV+3)//4*4}")
    e("  .amdhsa_group_segment_fixed_size 0")
    e("  .amdhsa_kernarg_size 104")
    e("  .amdhsa_user_sgpr_count 2")
    e("  .amdhsa_user_sgpr_kernarg_segment_ptr 1")
    e("  .amdhsa_system_sgpr_workgroup_id_x 1")
    e(".end_amdhsa_kernel")
    return "\n".join(L) + "\n"

if __name__ == "__main__":
    os.makedirs("exp", exist_ok=True)
    L_ = dict(stamps=True, light=True)
    V = {
        "k4": dict(),
        "k4_lt": dict(onep=False, **L_),
        "k4_a": dict(**L_),
        "k4_b": dict(tdelay=20, **L_),
        "k4_c": dict(bk=((0, 0),), **L_),
        "k4_d": dict(rdelay=12, **L_),
        "k4_e": dict(rdelay=24, **L_),
        "k4_f": dict(bk=((0, 0),), tdelay=20, rdelay=12, rbk=((0, 0),), **L_),
    }
    for n, kw in V.items():
        open(f"exp/{n}.s", "w").write(gen(**kw))
    print(" ".join(f"exp/{n}.s" for n in V)); print(", ".join(f'"exp/{n}.s"' for n in V))
    if len(sys.argv) > 1 and sys.argv[1] == "install":
        open(f"cdna_kernels/{NAME}.s", "w").write(gen())
```

```python
import sys, math, os, struct
NAME = "concat_heads__gqa_block_cached__gqa_block_cached__decode"
WS_BYTES = 553656320
STAMP_OFF = WS_BYTES - (1 << 20)
WS_Q = 0
WS_E = 256 << 10
WS_CNT = 320 << 10
CNT_STRIDE = 4352
WS_ML = 512 << 10
WS_H1 = 1 << 20
WS_H2 = 2 << 20
WS_USED = 3 << 20
F_LAND, F_END, F_QCNT, F_QRDY, F_WDONE, F_WLD, F_FREE, F_SL, F_PUB, F_SH = 0, 4, 8, 12, 16, 20, 24, 32, 36, 40
L_ML = 64
L_AL = 128
L_QF = 640
L_SLAB = 2688
SLAB_STRIDE = 2176
HEAD_STRIDE = 528
L_SHARE = 7040
L_QP = L_SHARE
L_P = 15872
L_RING = 32768

def f32bits(x):
    return struct.unpack("<I", struct.pack("<f", x))[0]

HEADER = """; Fused dual GQA decode (q-proj -> split-K flash decode -> out-proj), single persistent launch.
;             4-7 weight waves (q-proj slice, out-proj slice; wave 4 also gathers and reduces)"""

def gen(stamps=False, light=False, kvflag="nt", wflag="nt", POLL_MAX=200000, R=8, infl=20, grp=4,
        bk=((32, 8), (0, 2)), rbk=((32, 4), (0, 0)), qsleep=(48, 12), NSB=28, apos=12,
        tdelay=20, rdelay=24, adelay=6, pre2=None, lf='sc1', sf='sc1'):
    C = 2
    LDS_BYTES = L_RING + R * 16384
    assert LDS_BYTES <= 163840 and L_P + 16384 <= L_RING and L_SHARE + 8192 + 512 <= L_P
    assert NSB % 2 == 0
    ND = 16 * (32 - NSB)
    NSTAT = 64 + 2 * NSB
    L = []
    e = L.append
    kf = (" " + kvflag) if kvflag else ""
    wf = (" " + wflag) if wflag else ""
    dpp = "row_mask:0xf bank_mask:0xf"
    def Rg(i, n=4): return f"v[{i}:{i+n-1}]"
    def nop(n):
        while n > 0:
            k = min(n, 16); e(f"  s_nop {k-1}"); n -= k
    vLANE, vKOFF, vVOFF, vM, vL = 1, 2, 3, 4, 5
    vT0, vT1, vT2, vT3, vT4, vT5 = 6, 7, 8, 9, 10, 11
    vP = 12; vS = 20; vQ = 36; vO = 52; vVT = 84; vD = 116
    vG, vJ, vZ, vONE, vA, vB = 180, 181, 182, 183, 184, 185
    vR = 186
    NV = 196
    sW, sH, sMU, sPQ, sB, sX8 = 3, 4, 5, 6, 7, 8
    sIO, sTMP, sTMP2, sOFF0, sOFF1, sNEXT, sT, sSLOT, sFIDX = 9, 10, 11, 12, 13, 14, 15, 42, 43
    sK, sV, sWQ, sWO, sXX, sWS, sWO2, sOUT = 44, 48, 52, 56, 60, 64, 68, 72
    sC, sSELLO, sSELHI, sU, sPOLL, sTAG, sPH, sCNT = 76, 77, 78, 79, 80, 81, 82, 83
    sST = 84
    sA0, sA1, sA2, sA3 = 36, 37, 38, 39
    def SR(i): return f"s[{i}:{i+3}]"
    def stamp(i):
        if stamps: e(f"  s_memrealtime s[{sST+2*i}:{sST+2*i+1}]")
    def fin(final=False):
        e("  s_branch L_fin" if (stamps and (final or not light)) else "  s_endpgm")
    FINL = "L_fin" if (stamps and not light) else "L_end"
    def lds_wait(label, addr_v, off, want, sleep=1, pre=None):
        e(f"  s_mov_b32 s{sPOLL}, 0")
        e(f"{label}:")
        e(f"  ds_read_b32 v{vT5}, v{addr_v} offset:{off}")
        e(f"  s_add_u32 s{sPOLL}, s{sPOLL}, 1")
        e("  s_waitcnt lgkmcnt(0)")
        e(f"  v_readfirstlane_b32 s{sTMP}, v{vT5}")
        e(f"  s_cmp_ge_u32 s{sPOLL}, {POLL_MAX}")
        e(f"  s_cbranch_scc1 {label}_ok")
        e(f"  s_cmp_ge_i32 s{sTMP}, {want}")
        e(f"  s_cbranch_scc1 {label}_ok")
        if pre: pre()
        if sleep: e(f"  s_sleep {sleep}")
        e(f"  s_branch {label}")
        e(f"{label}_ok:")
    def lds_inc(off):
        e("  s_mov_b64 exec, 1")
        e(f"  ds_add_u32 v{vZ}, v{vONE} offset:{off}")
        e("  s_mov_b64 exec, -1")
    def backoff(label, loop, bk, lazy=None):
        e(f"  s_bcnt1_i32_b64 s{sTMP}, vcc")
        e("  s_mov_b64 exec, vcc")
        if lazy:
            e(f"  s_cmp_lg_u32 s{sPH}, 0")
            e(f"  s_cbranch_scc1 {label}_n")
            e("  s_sleep 100")
            e(f"  s_branch {loop}")
            e(f"{label}_n:")
        for k, (thr, sl) in enumerate(bk):
            if thr > 0:
                e(f"  s_cmp_le_u32 s{sTMP}, {thr}")
                e(f"  s_cbranch_scc1 {label}_{k}")
            if sl: e(f"  s_sleep {sl}")
            e(f"  s_branch {loop}")
            if thr > 0: e(f"{label}_{k}:")
    def first_wait(label, short):
        e(f"  s_cmp_lg_u32 s{sPH}, 0")
        e(f"  s_cbranch_scc1 {label}")
        for _ in range(adelay // 3): e("  s_sleep 110")
        e(f"{label}:")
        if short: e(f"  s_sleep {short}")

    e(HEADER)
    e(f"; @launch grid=(256,1,1) block=(512,1,1) lds={LDS_BYTES}")
    e('.amdgcn_target "amdgcn-amd-amdhsa--gfx950"')
    e(".text")
    e(f".globl {NAME}_kernel")
    e(".p2align 8")
    e(f".type {NAME}_kernel,@function")
    e(f"{NAME}_kernel:")
    e("  s_cmp_ge_u32 s2, 256")
    e("  s_cbranch_scc1 L_end")
    if stamps:
        for k in range(2, 16): e(f"  s_mov_b32 s{sST+k}, 0")
    stamp(0)
    e("  s_load_dwordx16 s[16:31], s[0:1], 0")
    e("  s_load_dwordx8 s[32:39], s[0:1], 64")
    e("  s_load_dwordx2 s[40:41], s[0:1], 96")
    e(f"  v_lshrrev_b32 v{vT0}, 6, v0")
    e(f"  v_and_b32 v{vLANE}, 63, v0")
    e(f"  s_and_b32 s{sX8}, s2, 7")
    e(f"  v_readfirstlane_b32 s{sW}, v{vT0}")
    e(f"  s_lshr_b32 s{sTMP2}, s2, 3")
    e(f"  s_lshr_b32 s{sH}, s{sTMP2}, 2")
    e(f"  s_add_u32 s{sB}, s{sTMP2}, s{sX8}")
    e(f"  s_and_b32 s{sB}, s{sB}, 3")
    e(f"  s_lshl_b32 s{sIO}, s{sX8}, 2")
    e(f"  s_add_u32 s{sIO}, s{sIO}, s{sB}")
    e(f"  s_lshr_b32 s{sPQ}, s{sIO}, 4")
    e(f"  s_and_b32 s{sMU}, s{sIO}, 15")
    e(f"  v_lshrrev_b32 v{vG}, 4, v{vLANE}")
    e(f"  v_and_b32 v{vJ}, 15, v{vLANE}")
    e(f"  v_lshlrev_b32 v{vVOFF}, 4, v{vLANE}")
    e(f"  v_and_b32 v{vT1}, 3, v{vLANE}")
    e(f"  v_bfe_u32 v{vT2}, v{vLANE}, 2, 2")
    e(f"  v_mov_b32 v{vZ}, 0")
    e(f"  v_mov_b32 v{vONE}, 1")
    for q in range(4):
        e(f"  v_lshl_add_u32 v{vT3}, v{vG}, 2, {q}")
        e(f"  v_xor_b32 v{vT3}, v{vT3}, v{vLANE}")
        e(f"  v_lshlrev_b32 v{vR+q}, 4, v{vT3}")
    e(f"  s_sub_u32 s{sU}, s{sW}, 4")
    e(f"  s_lshl_b32 s{sCNT}, s{sB}, 3")
    e(f"  s_add_u32 s{sCNT}, s{sCNT}, s{sH}")
    e(f"  s_lshl_b32 s{sNEXT}, s{sCNT}, 3")
    e(f"  s_add_u32 s{sNEXT}, s{sNEXT}, s{sX8}")
    e(f"  s_lshl_b32 s{sNEXT}, s{sNEXT}, 19")
    e(f"  s_mul_i32 s{sCNT}, s{sCNT}, {CNT_STRIDE}")
    e(f"  s_add_u32 s{sCNT}, s{sCNT}, {WS_CNT}")
    for srd, nb in ((sK, 0x8000000), (sV, 0x8000000), (sWQ, 0x400000), (sWO, 0x400000), (sWO2, 0x400000), (sXX, 4096), (sWS, WS_USED), (sOUT, 8192)):
        e(f"  s_mov_b32 s{srd+2}, {nb}")
        e(f"  s_mov_b32 s{srd+3}, 0x20000")
    e(f"  s_mov_b32 s{sSELLO}, 0x05040100")
    e(f"  s_mov_b32 s{sSELHI}, 0x07060302")
    e(f"  s_mov_b32 s{sC}, {f32bits(128 ** -0.5 * math.log2(math.e)):#x}")
    e(f"  s_mov_b32 s{sPH}, 0")
    e(f"  s_cmp_eq_u32 s{sPQ}, 0")
    e("  s_waitcnt lgkmcnt(0)")
    e(f"  s_cselect_b64 s[{sWQ}:{sWQ+1}], s[22:23], s[32:33]")
    e(f"  s_cselect_b64 s[{sXX}:{sXX+1}], s[16:17], s[26:27]")
    e(f"  s_mov_b64 s[{sK}:{sK+1}], s[18:19]")
    e(f"  s_mov_b64 s[{sV}:{sV+1}], s[30:31]")
    e(f"  s_mov_b64 s[{sWO}:{sWO+1}], s[24:25]")
    e(f"  s_mov_b64 s[{sWO2}:{sWO2+1}], s[34:35]")
    e(f"  s_mov_b64 s[{sWS}:{sWS+1}], s[40:41]")
    e(f"  s_mov_b64 s[{sOUT}:{sOUT+1}], s[36:37]")
    e(f"  s_cmp_ge_u32 s{sW}, 4")
    e("  s_cbranch_scc1 L_wwave")
    e(f"  s_cmp_eq_u32 s{sW}, 3")
    e("  s_cbranch_scc1 L_helper")
    e(f"  s_cmp_lg_u32 s{sW}, 0")
    e("  s_cbranch_scc1 L_cons")

    e("  s_setprio 1")
    sBASE, sLIM, sGB = sA0, sA1, sA2
    e(f"  s_mov_b32 s{sBASE}, s{sNEXT}")
    e(f"  s_mov_b32 s{sSLOT}, {L_RING}")
    e(f"  s_mov_b32 s{sT}, 0")
    e(f"  s_mov_b32 s{sFIDX}, {4 * ((-R) % C)}")
    e(f"  s_mov_b32 s{sLIM}, 32")
    W_ = infl - grp
    pubpos = None
    for jj in range(0, 16, grp):
        if (W_ - jj) % 16 == 0: pubpos = (jj, (W_ - jj) // 16)
    assert pubpos is not None
    def publish(expr_add):
        e(f"  s_add_i32 s{sTMP2}, s{sT}, {expr_add}")
        e(f"  v_mov_b32 v{vT0}, s{sTMP2}")
        e("  s_mov_b64 exec, 1")
        e(f"  ds_max_i32 v{vZ}, v{vT0} offset:{F_LAND}")
        e("  s_mov_b64 exec, -1")
    def issue_tile(first=False, claim=None, mixed=False):
        for j in range(16):
            T, u = j // 4, j % 4
            if j % grp == 0 and not first:
                e(f"  s_waitcnt vmcnt({W_})")
                if j == pubpos[0]:
                    publish(-pubpos[1])
            if claim is not None and j == apos:
                e(f"  v_mov_b32 v{claim}, 1")
                e("  s_mov_b64 exec, 1")
                e(f"  buffer_atomic_add v{claim}, v{vZ}, {SR(sWS)}, s{sCNT} offen sc0 sc1")
                e("  s_mov_b64 exec, -1")
            if u == 0:
                e(f"  s_add_u32 m0, s{sSLOT}, {j*1024}")
                e(f"  s_add_u32 s{sOFF1}, s{sNEXT}, {4096 * ((T & 1) if mixed else T)}")
            if mixed and T >= 2:
                e(f"  buffer_load_dwordx4 v{vVOFF}, {SR(sV)}, s{sOFF1} offen offset:{u*1024}{kf} lds")
            else:
                e(f"  buffer_load_dwordx4 v{vR+u}, {SR(sK)}, s{sOFF1} offen offset:{u*1024}{kf} lds")
        if not mixed: e(f"  s_add_u32 s{sNEXT}, s{sNEXT}, 16384")
        e(f"  s_add_u32 s{sSLOT}, s{sSLOT}, 16384")
        e(f"  s_cmp_ge_u32 s{sSLOT}, {LDS_BYTES}")
        e(f"  s_cselect_b32 s{sSLOT}, {L_RING}, s{sSLOT}")
        e(f"  s_xor_b32 s{sFIDX}, s{sFIDX}, 4")
        e(f"  s_add_u32 s{sT}, s{sT}, 1")
    def drain_pub():
        e("  s_waitcnt vmcnt(0)")
        publish(0)
    def free_wait(tag):
        e(f"  v_mov_b32 v{vA}, s{sFIDX}")
        e(f"  s_sub_u32 s{sOFF0}, s{sT}, {R-1}")
        lds_wait(f"L_free{tag}", vA, F_FREE, f"s{sOFF0}", pre=drain_pub)
    issue_tile(first=True)
    for q in range(4):
        e(f"  v_xor_b32 v{vR+4+q}, v{vR+q}, v{vVOFF}")
    e(f"  s_andn2_b32 s{sGB}, s{sBASE}, 0x380000")
    e(f"  s_add_u32 s{sGB}, s{sGB}, {NSB*16384}")
    e("  s_barrier")
    stamp(1)
    e("L_lloop:")
    e(f"  s_cmp_lg_u32 s{sT}, {R-2}")
    e("  s_cbranch_scc1 L_nowd")
    lds_wait("L_wd", vZ, F_WDONE, 4, pre=drain_pub)
    e("L_nowd:")
    e(f"  s_cmp_lt_u32 s{sT}, {R}")
    e("  s_cbranch_scc1 L_isfree")
    free_wait("a")
    e("L_isfree:")
    issue_tile()
    e(f"  s_cmp_lt_u32 s{sT}, s{sLIM}")
    e("  s_cbranch_scc1 L_lloop")
    e(f"  s_add_u32 s{sPH}, s{sPH}, 1")
    e(f"  s_cmp_eq_u32 s{sPH}, 4")
    e("  s_cbranch_scc1 L_lstat")
    if stamps:
        for k in (1, 2, 3):
            e(f"  s_cmp_lg_u32 s{sPH}, {k}")
            e(f"  s_cbranch_scc1 L_ps{k}")
            stamp(1 + k)
            e(f"L_ps{k}:")
    e(f"  s_mov_b64 s[{sK}:{sK+1}], s[20:21]")
    e("  s_mov_b64 s[20:21], s[28:29]")
    e(f"  s_cmp_eq_u32 s{sPH}, 2")
    e("  s_cselect_b64 s[20:21], s[30:31], s[20:21]")
    for q in range(4):
        e(f"  v_xor_b32 v{vR+q}, v{vR+q}, v{vR+4+q}")
    e(f"  s_mov_b32 s{sNEXT}, s{sBASE}")
    e(f"  s_cmp_eq_u32 s{sPH}, 1")
    e(f"  s_cselect_b32 s{sTMP}, 32, {NSB}")
    e(f"  s_add_u32 s{sLIM}, s{sLIM}, s{sTMP}")
    e(f"  s_cmp_eq_u32 s{sPH}, 3")
    e(f"  s_cselect_b32 s{sTMP}, {2 if ND else 0}, 0")
    e(f"  s_sub_u32 s{sLIM}, s{sLIM}, s{sTMP}")
    e("  s_branch L_lloop")
    e("L_lstat:")
    vC = [vS, vS + 1]
    if ND:
        for k in range(2):
            free_wait(f"b{k}")
            issue_tile(claim=vC[k])
        stamp(5)
        e(f"  s_mov_b64 s[{sK}:{sK+1}], s[28:29]")
        for q in range(4):
            e(f"  v_xor_b32 v{vR+q}, v{vR+q}, v{vR+4+q}")
        need = min(W_, (16 - apos) + 17)
        e("L_dloop:")
        for k in range(2):
            e(f"  s_waitcnt vmcnt({need})")
            e(f"  v_readfirstlane_b32 s{sNEXT}, v{vC[k]}")
            e(f"  s_cmp_ge_u32 s{sT}, {NSTAT + ND}")
            e("  s_cbranch_scc1 L_lend")
            e(f"  s_cmp_ge_u32 s{sNEXT}, {ND}")
            e("  s_cbranch_scc1 L_lend")
            e(f"  s_and_b32 s{sTMP}, s{sNEXT}, 7")
            e(f"  s_lshl_b32 s{sTMP}, s{sTMP}, 6")
            e(f"  s_lshr_b32 s{sNEXT}, s{sNEXT}, 3")
            e(f"  s_add_u32 s{sNEXT}, s{sNEXT}, s{sTMP}")
            e(f"  s_lshl_b32 s{sNEXT}, s{sNEXT}, 13")
            e(f"  s_add_u32 s{sNEXT}, s{sNEXT}, s{sGB}")
            free_wait(f"c{k}")
            issue_tile(claim=vC[k], mixed=True)
        e("  s_branch L_dloop")
    e("L_lend:")
    e(f"  v_mov_b32 v{vT1}, s{sT}")
    e(f"  ds_write_b32 v{vZ}, v{vT1} offset:{F_END}")
    e("  s_waitcnt vmcnt(16)")
    publish(-1)
    e("  s_waitcnt vmcnt(0)")
    publish(0)
    stamp(6)
    fin()

    e("L_wwave:")
    e("  s_setprio 2")
    WST = L_RING + (R - 2) * 16384
    e(f"  v_lshrrev_b32 v{vT0}, 2, v{vLANE}")
    e(f"  v_lshlrev_b32 v{vT3}, 4, v{vT1}")
    e(f"  v_lshl_add_u32 v{vT4}, v{vT0}, 13, v{vT3}")
    e(f"  s_lshl_b32 s{sTMP}, s{sU}, 20")
    e(f"  s_lshl_b32 s{sTMP2}, s{sH}, 10")
    e(f"  s_add_u32 s{sTMP}, s{sTMP}, s{sTMP2}")
    e(f"  s_lshl_b32 s{sTMP2}, s{sMU}, 6")
    e(f"  s_add_u32 s{sTMP}, s{sTMP}, s{sTMP2}")
    e(f"  s_lshl_b32 s{sSLOT}, s{sU}, 13")
    e(f"  s_add_u32 s{sSLOT}, s{sSLOT}, {WST}")
    for n in range(8):
        e(f"  s_add_u32 m0, s{sSLOT}, {n*1024}")
        if n: e(f"  s_add_u32 s{sTMP}, s{sTMP}, {16*8192}")
        else: e("  s_nop 0")
        e(f"  buffer_load_dwordx4 v{vT4}, {SR(sWQ)}, s{sTMP} offen{wf} lds")
    e(f"  v_lshlrev_b32 v{vT0}, 10, v{vT1}")
    e(f"  v_lshl_add_u32 v{vT0}, v{vT2}, 6, v{vT0}")
    e(f"  v_lshl_add_u32 v{vT0}, v{vG}, 4, v{vT0}")
    e(f"  s_lshl_b32 s{sTMP2}, s{sU}, 8")
    e(f"  buffer_load_dwordx4 {Rg(vQ)}, v{vT0}, {SR(sXX)}, s{sTMP2} offen")
    e(f"  s_load_dword s{sTAG}, s[40:41], {WS_E:#x}")
    e("  s_barrier")
    e(f"  v_lshlrev_b32 v{vT3}, 2, v{vJ}")
    e(f"  v_add_u32 v{vT3}, s{sSLOT}, v{vT3}")
    e(f"  v_lshl_add_u32 v{vT0}, v{vG}, 9, v{vT3}")
    e(f"  v_lshl_add_u32 v{vT4}, v{vG}, 2, v{vJ}")
    e(f"  v_lshlrev_b32 v{vT4}, 5, v{vT4}")
    e(f"  s_lshl_b32 s{sTMP}, s{sU}, 9")
    e(f"  v_add_u32 v{vT4}, s{sTMP}, v{vT4}")
    e(f"  v_lshrrev_b32 v{vKOFF}, 3, v{vLANE}")
    e(f"  v_lshlrev_b32 v{vKOFF}, 10, v{vKOFF}")
    e(f"  v_and_b32 v{vT3}, 7, v{vLANE}")
    e(f"  v_lshl_add_u32 v{vKOFF}, v{vT3}, 4, v{vKOFF}")
    e(f"  s_lshl_b32 s{sA3}, s{sH}, 2")
    e(f"  s_add_u32 s{sA3}, s{sA3}, s{sB}")
    e(f"  s_lshl_b32 s{sOFF0}, s{sA3}, 17")
    e(f"  s_lshl_b32 s{sTMP2}, s{sU}, 15")
    e(f"  s_add_u32 s{sOFF0}, s{sOFF0}, s{sTMP2}")
    e(f"  s_lshl_b32 s{sTMP2}, s{sX8}, 7")
    e(f"  s_add_u32 s{sOFF0}, s{sOFF0}, s{sTMP2}")
    e("  s_waitcnt vmcnt(0)")
    stamp(1)
    WR, WE = vD, vD + 32
    for u in range(4):
        for q in range(8):
            e(f"  ds_read_b32 v{WR+8*u+q}, v{vT0} offset:{u*2048+q*64}")
    for u in range(1, 4):
        for k in range(4):
            e(f"  v_mov_b32_dpp v{vQ+4*u+k}, v{vQ+k} row_ror:{16-4*u} {dpp}")
    e("  s_waitcnt lgkmcnt(0)")
    for u in range(4):
        for x in range(4):
            a, b = WR + 8*u + 2*x, WR + 8*u + 2*x + 1
            e(f"  v_perm_b32 v{WE+8*u+x}, v{b}, v{a}, s{sSELLO}")
            e(f"  v_perm_b32 v{WE+8*u+4+x}, v{b}, v{a}, s{sSELHI}")
    nop(2)
    for u in range(4):
        for par in range(2):
            c = "0" if u == 0 else Rg(vS+4*par)
            e(f"  v_mfma_f32_16x16x32_bf16 {Rg(vS+4*par)}, {Rg(WE+8*u+4*par)}, {Rg(vQ+4*u)}, {c}")
    e("  s_mov_b32 exec_lo, 0x000f000f")
    e("  s_mov_b32 exec_hi, 0x000f000f")
    nop(8)
    e(f"  ds_write_b128 v{vT4}, {Rg(vS)} offset:{L_QP}")
    e(f"  ds_write_b128 v{vT4}, {Rg(vS+4)} offset:{L_QP+16}")
    lds_inc(F_QCNT)
    stamp(2)
    for n in range(8):
        e(f"  s_add_u32 m0, s{sSLOT}, {n*1024}")
        e(f"  s_add_u32 s{sTMP}, s{sOFF0}, {(n & 3)*8192}")
        e(f"  buffer_load_dwordx4 v{vKOFF}, {SR(sWO if n < 4 else sWO2)}, s{sTMP} offen{wf} lds")
    e(f"  v_lshrrev_b32 v{vT0}, 1, v{vJ}")
    e(f"  v_lshlrev_b32 v{vT0}, 2, v{vT0}")
    e(f"  v_lshl_add_u32 v{vT0}, v{vG}, 8, v{vT0}")
    e(f"  s_lshl_b32 s{sTMP}, s{sU}, 5")
    e(f"  s_add_u32 s{sTMP}, s{sTMP}, {WST}")
    e(f"  v_add_u32 v{vT0}, s{sTMP}, v{vT0}")
    e(f"  v_and_b32 v{vT3}, 1, v{vLANE}")
    e(f"  v_mul_u32_u24 v{vT3}, 0x0202, v{vT3}")
    e(f"  v_lshl_add_u32 v{vT3}, v{vT3}, 16, v{vT3}")
    e(f"  v_add_u32 v{vT3}, s{sSELLO}, v{vT3}")
    e("  s_waitcnt vmcnt(0)")
    lds_inc(F_WLD)
    lds_wait("L_wld", vZ, F_WLD, 4)
    WO = vO
    for p in range(2):
        for u in range(4):
            for q in range(8):
                e(f"  ds_read_b32 v{WR+32*p+8*u+q}, v{vT0} offset:{u*8192+p*4096+(q&3)*1024+(q>>2)*128}")
    e("  s_waitcnt lgkmcnt(0)")
    lds_inc(F_WDONE)
    for p in range(2):
        for u in range(4):
            for x in range(4):
                a, b = WR + 32*p + 8*u + 2*x, WR + 32*p + 8*u + 2*x + 1
                e(f"  v_perm_b32 v{WO+16*p+4*u+x}, v{b}, v{a}, v{vT3}")
    stamp(3)
    Bq = vD; MLr = vVT; X = vD + 32; Y = vP; G0 = vVT + 8
    e(f"  s_lshl_b32 s{sOFF0}, s{sA3}, 13")
    e(f"  s_lshl_b32 s{sTMP}, s{sU}, 11")
    e(f"  s_add_u32 s{sOFF0}, s{sOFF0}, s{sTMP}")
    e(f"  s_add_u32 s{sOFF0}, s{sOFF0}, {WS_H1}")
    e(f"  s_lshl_b32 s{sOFF1}, s{sA3}, 8")
    e(f"  s_lshl_b32 s{sTMP2}, s{sU}, 6")
    e(f"  s_add_u32 s{sOFF1}, s{sOFF1}, s{sTMP2}")
    e(f"  s_add_u32 s{sOFF1}, s{sOFF1}, {WS_ML}")
    e(f"  v_lshlrev_b32 v{vT1}, 3, v{vG}")
    e(f"  s_lshl_b32 s{sTMP2}, s{sU}, 3")
    e(f"  s_and_b32 s{sTMP2}, s{sTMP2}, 8")
    e(f"  s_add_u32 s{sTMP}, s{sTMP}, {L_SHARE}")
    for k in range(2):
        e(f"  v_add_u32 v{vT3}, s{sTMP2}, v{vG}")
        if k: e(f"  v_add_u32 v{vT3}, 4, v{vT3}")
        e(f"  v_xor_b32 v{vT3}, v{vT3}, v{vLANE}")
        e(f"  v_lshlrev_b32 v{vT3}, 4, v{vT3}")
        e(f"  v_add_u32 v{vR+4+k}, s{sTMP}, v{vT3}")
    e(f"  s_lshl_b32 s{sTMP2}, s{sU}, 6")
    e(f"  v_add_u32 v{vR+6}, s{sTMP2}, v{vT1}")
    for u in range(4):
        e(f"  v_add_u32 v{vT3}, {4*u}, v{vG}")
        e(f"  v_xor_b32 v{vT3}, v{vT3}, v{vJ}")
        e(f"  v_lshlrev_b32 v{vT3}, 4, v{vT3}")
        e(f"  v_lshl_add_u32 v{vR+u}, v{vJ}, 8, v{vT3}")
    e(f"  v_lshlrev_b32 v{vB}, 3, v{vJ}")
    e(f"  s_add_u32 s{sTAG}, s{sTAG}, 0x9e3779b9")
    e(f"  v_mov_b32 v{Y+1}, s{sTAG}")
    e(f"  v_mov_b32 v{Y+3}, s{sTAG}")
    e(f"  v_bfe_u32 v{vA}, v{vLANE}, 2, 1")
    e(f"  v_lshl_add_u32 v{vA}, v{vG}, 1, v{vA}")
    e(f"  v_lshlrev_b32 v{vA}, 12, v{vA}")
    e(f"  v_bfe_u32 v{vT4}, v{vLANE}, 3, 1")
    e(f"  v_lshl_add_u32 v{vA}, v{vT4}, 6, v{vA}")
    e(f"  v_and_b32 v{vT3}, 3, v{vLANE}")
    e(f"  v_lshl_add_u32 v{vA}, v{vT3}, 4, v{vA}")
    e(f"  v_lshlrev_b32 v{vM}, 11, v{vT3}")
    e(f"  v_bfe_u32 v{vT4}, v{vLANE}, 2, 1")
    e(f"  v_lshl_add_u32 v{vM}, v{vT4}, 10, v{vM}")
    sRO0, sRO1 = sA0, sA1
    e(f"  s_lshl_b32 s{sRO0}, s{sX8}, 17")
    e(f"  s_add_u32 s{sRO0}, s{sRO0}, {WS_H2}")
    e(f"  s_lshl_b32 s{sNEXT}, s{sU}, 15")
    e(f"  s_add_u32 s{sNEXT}, s{sNEXT}, s{sRO0}")
    e(f"  s_lshl_b32 s{sTMP}, s{sA3}, 7")
    e(f"  s_add_u32 s{sNEXT}, s{sNEXT}, s{sTMP}")
    e(f"  s_lshl_b32 s{sTMP}, s{sA3}, 12")
    e(f"  s_add_u32 s{sRO0}, s{sRO0}, s{sTMP}")
    e(f"  s_lshl_b32 s{sRO1}, s{sX8}, 7")
    e(f"  s_lshl_b32 s{sTMP}, s{sA3}, 2")
    e(f"  s_add_u32 s{sRO1}, s{sRO1}, s{sTMP}")
    if pre2 is not None:
        e(f"  s_lshl_b32 s{sTMP}, s{sU}, 10")
        e(f"  s_add_u32 s{sTMP}, s{sTMP}, s{sRO0}")
        if pre2.startswith("w"):
            for k in range(4): e(f"  v_mov_b32 v{X+k}, 0")
            e(f"  buffer_store_dwordx4 {Rg(X)}, v{vVOFF}, {SR(sWS)}, s{sTMP} offen {pre2[1:]}")
        else:
            e(f"  buffer_load_dwordx4 {Rg(X)}, v{vVOFF}, {SR(sWS)}, s{sTMP} offen {pre2}")
        e("  s_waitcnt vmcnt(0)")
    e("L_tpass:")
    e(f"  s_add_u32 s{sT}, s{sPH}, 1")
    lds_wait("L_pubw", vZ, F_PUB, f"s{sT}")
    stamp(6)
    e(f"  s_lshl_b32 s{sT}, s{sT}, 2")
    first_wait("L_tfw", tdelay)
    e(f"  s_mov_b32 s{sPOLL}, 0")
    e("L_tpoll:")
    for k in range(2):
        e(f"  buffer_load_dwordx4 {Rg(G0+4*k)}, v{vVOFF}, {SR(sWS)}, s{sOFF0} offen offset:{1024*k} {lf}")
    for k in range(2):
        e(f"  buffer_load_dwordx2 {Rg(G0+8+2*k,2)}, v{vT1}, {SR(sWS)}, s{sOFF1} offen offset:{32*k} {lf}")
    e(f"  s_add_u32 s{sPOLL}, s{sPOLL}, 1")
    e("  s_waitcnt vmcnt(0)")
    e(f"  v_max3_u32 v{vT2}, v{G0}, v{G0+1}, v{G0+2}")
    e(f"  v_max3_u32 v{vT3}, v{G0+3}, v{G0+4}, v{G0+5}")
    e(f"  v_max3_u32 v{vT2}, v{vT2}, v{G0+6}, v{G0+7}")
    e(f"  v_max3_u32 v{vT3}, v{vT3}, v{G0+8}, v{G0+9}")
    e(f"  v_max3_u32 v{vT2}, v{vT2}, v{G0+10}, v{G0+11}")
    e(f"  v_max_u32 v{vT2}, v{vT2}, v{vT3}")
    e(f"  v_cmp_eq_u32 vcc, -1, v{vT2}")
    e(f"  s_cmp_ge_u32 s{sPOLL}, {POLL_MAX}")
    e("  s_cbranch_scc1 L_tok")
    e("  s_cbranch_vccz L_tok")
    backoff("L_tbk", "L_tpoll", bk, lazy=True)
    e("L_tok:")
    e("  s_mov_b64 exec, -1")
    stamp(5)
    e(f"  ds_write_b128 v{vR+4}, {Rg(G0)}")
    e(f"  ds_write_b128 v{vR+5}, {Rg(G0+4)} offset:1024")
    e("  s_mov_b32 exec_lo, 0x00010001")
    e("  s_mov_b32 exec_hi, 0x00010001")
    e(f"  ds_write_b64 v{vR+6}, {Rg(G0+8,2)} offset:{L_SHARE+8192}")
    e(f"  ds_write_b64 v{vR+6}, {Rg(G0+10,2)} offset:{L_SHARE+8192+32}")
    lds_inc(F_SH)
    lds_wait("L_shw", vZ, F_SH, f"s{sT}", sleep=0)
    for sg in range(2):
        e(f"  ds_read_b64 {Rg(MLr+2*sg,2)}, v{vB} offset:{L_SHARE+8192+128*sg}")
    for u in range(4):
        for sg in range(2):
            e(f"  ds_read_b128 {Rg(Bq+16*sg+4*u)}, v{vR+u} offset:{L_SHARE+4096*sg}")
    e("  s_waitcnt lgkmcnt(8)")
    e(f"  v_max_f32 v{vT2}, v{MLr}, v{MLr+2}")
    nop(2)
    e(f"  v_max_f32_dpp v{vT2}, v{vT2}, v{vT2} row_ror:4 {dpp}")
    nop(2)
    e(f"  v_max_f32_dpp v{vT2}, v{vT2}, v{vT2} row_ror:8 {dpp}")
    e(f"  v_sub_f32 v{MLr}, v{MLr}, v{vT2}")
    e(f"  v_sub_f32 v{MLr+2}, v{MLr+2}, v{vT2}")
    e(f"  v_exp_f32 v{MLr}, v{MLr}")
    e(f"  v_exp_f32 v{MLr+2}, v{MLr+2}")
    for u in range(4):
        e(f"  s_waitcnt lgkmcnt({6-2*u})")
        for sg in range(2):
            c = "0" if u == 0 else Rg(vS+4*sg)
            e(f"  v_mfma_f32_16x16x32_bf16 {Rg(vS+4*sg)}, {Rg(WO+4*u)}, {Rg(Bq+16*sg+4*u)}, {c}")
    e(f"  v_mul_f32 v{MLr}, v{MLr}, v{MLr+1}")
    e(f"  v_mul_f32 v{MLr+1}, v{MLr+2}, v{MLr+3}")
    e(f"  v_add_f32 v{vT3}, v{MLr}, v{MLr+1}")
    nop(2)
    e(f"  v_add_f32_dpp v{vT3}, v{vT3}, v{vT3} row_ror:4 {dpp}")
    nop(2)
    e(f"  v_add_f32_dpp v{vT3}, v{vT3}, v{vT3} row_ror:8 {dpp}")
    e(f"  v_rcp_f32 v{vT3}, v{vT3}")
    for k in range(4):
        e(f"  v_mul_f32 v{vS+k}, v{vS+k}, v{MLr}")
    for k in range(4):
        e(f"  v_fmac_f32 v{vS+k}, v{vS+4+k}, v{MLr+1}")
    for k in range(4):
        e(f"  v_mul_f32 v{vS+k}, v{vS+k}, v{vT3}")
    for k in range(4):
        e(f"  v_add_f32_dpp v{vS+k}, v{vS+k}, v{vS+k} row_ror:4 {dpp}")
    e(f"  s_cmp_lg_u32 s{sPH}, 0")
    e("  s_cbranch_scc1 L_tlast")
    for k in range(4):
        e(f"  v_add_f32_dpp v{Y+2*(k&1)}, v{vS+k}, v{vS+k} row_ror:8 row_mask:0xf bank_mask:{1 << (k >> 1):#x}")
    e(f"  s_mov_b32 s{sPH}, 1")
    for k in range(16):
        e(f"  v_mov_b32 v{WO+k}, v{WO+16+k}")
    e(f"  s_add_u32 s{sOFF0}, s{sOFF0}, {256 << 10}")
    e(f"  s_add_u32 s{sOFF1}, s{sOFF1}, {8 << 10}")
    e("  s_branch L_tpass")
    e("L_tlast:")
    for k in range(4):
        e(f"  v_add_f32_dpp v{Y+2*(k&1)}, v{vS+k}, v{vS+k} row_ror:8 row_mask:0xf bank_mask:{4 << (k >> 1):#x}")
    e(f"  buffer_store_dwordx4 {Rg(Y)}, v{vA}, {SR(sWS)}, s{sNEXT} offen {sf}")
    e(f"  s_cmp_lg_u32 s{sW}, 4")
    e(f"  s_cbranch_scc1 {FINL}")
    if rdelay: e(f"  s_sleep {rdelay}")
    e(f"  s_mov_b32 s{sPOLL}, 0")
    e("L_rpoll:")
    for k in range(4):
        e(f"  buffer_load_dwordx4 {Rg(X+4*k)}, v{vVOFF}, {SR(sWS)}, s{sRO0} offen offset:{1024*k} {lf}")
    e(f"  s_add_u32 s{sPOLL}, s{sPOLL}, 1")
    e("  s_waitcnt vmcnt(0)")
    for k in range(8):
        e(f"  v_xor_b32 v{X+16+k}, s{sTAG}, v{X+2*k+1}")
    e(f"  v_or3_b32 v{vT2}, v{X+16}, v{X+17}, v{X+18}")
    e(f"  v_or3_b32 v{vT3}, v{X+19}, v{X+20}, v{X+21}")
    e(f"  v_or3_b32 v{vT2}, v{vT2}, v{X+22}, v{X+23}")
    e(f"  v_or_b32 v{vT2}, v{vT2}, v{vT3}")
    e(f"  v_cmp_ne_u32 vcc, 0, v{vT2}")
    e(f"  s_cmp_ge_u32 s{sPOLL}, {POLL_MAX}")
    e("  s_cbranch_scc1 L_rok")
    e("  s_cbranch_vccz L_rok")
    backoff("L_rbk", "L_rpoll", rbk)
    e("L_rok:")
    e("  s_mov_b64 exec, -1")
    stamp(4)
    for c in (0, 2):
        e(f"  v_add_f32 v{X+c}, v{X+c}, v{X+4+c}")
        e(f"  v_add_f32 v{X+8+c}, v{X+8+c}, v{X+12+c}")
    for c in (0, 2):
        e(f"  v_add_f32 v{X+c}, v{X+c}, v{X+8+c}")
    nop(1)
    for c in (0, 2):
        e(f"  v_add_f32_dpp v{X+c}, v{X+c}, v{X+c} row_ror:8 {dpp}")
    for op in ("v_permlane16_swap_b32", "v_permlane32_swap_b32"):
        for c in (0, 2):
            e(f"  v_mov_b32 v{X+4+c}, v{X+c}")
        nop(2)
        for c in (0, 2):
            e(f"  {op} v{X+c}, v{X+4+c}")
        nop(1)
        for c in (0, 2):
            e(f"  v_add_f32 v{X+c}, v{X+c}, v{X+4+c}")
    e(f"  v_cvt_pk_bf16_f32 v{vT2}, v{X}, v{X+2}")
    e("  s_mov_b64 exec, 0xff")
    e(f"  buffer_store_dword v{vT2}, v{vM}, {SR(sOUT)}, s{sRO1} offen")
    e("  s_cmp_lg_u32 s2, 0")
    e("  s_cbranch_scc1 L_noep")
    e("  s_mov_b64 exec, 1")
    e(f"  s_mov_b32 s{sTMP2}, {WS_E}")
    e(f"  buffer_store_dword v{Y+1}, v{vZ}, {SR(sWS)}, s{sTMP2} offen")
    e("L_noep:")
    if stamps: e("  s_waitcnt vmcnt(0)")
    fin(True)

    e("L_helper:")
    e("  s_setprio 3")
    e(f"  s_load_dword s{sTAG}, s[40:41], {WS_E:#x}")
    e(f"  v_lshlrev_b32 v{vT4}, 13, v{vG}")
    e(f"  v_lshl_add_u32 v{vT4}, v{vJ}, 4, v{vT4}")
    e(f"  v_lshlrev_b32 v{vA}, 8, v{vG}")
    e(f"  s_lshl_b32 s{sA0}, s{sIO}, 8")
    e(f"  s_lshl_b32 s{sTMP2}, s{sH}, 15")
    e(f"  s_add_u32 s{sA0}, s{sA0}, s{sTMP2}")
    e(f"  s_add_u32 s{sA0}, s{sA0}, {WS_H1}")
    e(f"  s_lshl_b32 s{sA1}, s{sIO}, 3")
    e(f"  s_lshl_b32 s{sTMP2}, s{sH}, 10")
    e(f"  s_add_u32 s{sA1}, s{sA1}, s{sTMP2}")
    e(f"  s_add_u32 s{sA1}, s{sA1}, {WS_ML}")
    e(f"  s_add_u32 s{sA2}, s{sA0}, {256 << 10}")
    e(f"  s_add_u32 s{sA3}, s{sA1}, {8 << 10}")
    for k in range(4): e(f"  v_mov_b32 v{vO+k}, -1")
    e(f"  buffer_store_dwordx4 {Rg(vO)}, v{vT4}, {SR(sWS)}, s{sA0} offen sc1")
    e(f"  buffer_store_dwordx4 {Rg(vO)}, v{vT4}, {SR(sWS)}, s{sA2} offen sc1")
    e("  s_mov_b32 exec_lo, 0x00010001")
    e("  s_mov_b32 exec_hi, 0x00010001")
    e(f"  buffer_store_dwordx2 {Rg(vO,2)}, v{vA}, {SR(sWS)}, s{sA1} offen sc1")
    e(f"  buffer_store_dwordx2 {Rg(vO,2)}, v{vA}, {SR(sWS)}, s{sA3} offen sc1")
    e(f"  s_cmp_lg_u32 s{sX8}, 0")
    e("  s_cbranch_scc1 L_nocnt")
    e("  s_mov_b64 exec, 1")
    e(f"  buffer_store_dword v{vZ}, v{vZ}, {SR(sWS)}, s{sCNT} offen sc1")
    e("L_nocnt:")
    e("  s_mov_b64 exec, -1")
    e("  s_barrier")
    e(f"  v_lshl_add_u32 v{vT0}, v{vT2}, 2, v{vG}")
    e(f"  v_lshlrev_b32 v{vT0}, 5, v{vT0}")
    e(f"  v_lshl_add_u32 v{vT0}, v{vT1}, 2, v{vT0}")
    e(f"  v_lshlrev_b32 v{vT2}, 14, v{vG}")
    e(f"  v_lshl_add_u32 v{vT2}, v{vJ}, 3, v{vT2}")
    e(f"  s_lshl_b32 s{sOFF0}, s{sH}, 11")
    e(f"  s_lshl_b32 s{sOFF1}, s{sPQ}, 16")
    e(f"  s_add_u32 s{sOFF1}, s{sOFF1}, s{sOFF0}")
    e(f"  s_lshl_b32 s{sTMP2}, s{sMU}, 7")
    e(f"  s_add_u32 s{sOFF1}, s{sOFF1}, s{sTMP2}")
    e(f"  s_lshl_b32 s{sTMP2}, s{sB}, 14")
    e(f"  s_add_u32 s{sOFF0}, s{sOFF0}, s{sTMP2}")
    e(f"  v_lshlrev_b32 v{vB}, 3, v{vLANE}")
    e(f"  v_add_u32 v{vB}, {L_QF}, v{vB}")
    e("  s_waitcnt lgkmcnt(0)")
    e(f"  s_add_u32 s{sTAG}, s{sTAG}, 0x9e3779b9")
    e(f"  v_mov_b32 v{vP+1}, s{sTAG}")
    e(f"  v_mov_b32 v{vP+3}, s{sTAG}")
    lds_wait("L_qcnt", vZ, F_QCNT, 4, sleep=0)
    stamp(1)
    for w in range(4):
        e(f"  ds_read_b32 v{vVT+2*w}, v{vT0} offset:{L_QP+w*512}")
        e(f"  ds_read_b32 v{vVT+2*w+1}, v{vT0} offset:{L_QP+w*512+16}")
    e("  s_waitcnt lgkmcnt(0)")
    for st in (1, 2):
        for half in range(2):
            for w in range(0, 4, 2*st):
                e(f"  v_add_f32 v{vVT+2*w+half}, v{vVT+2*w+half}, v{vVT+2*(w+st)+half}")
    e(f"  v_cvt_pk_bf16_f32 v{vP}, v{vVT}, v{vVT+1}")
    nop(2)
    e(f"  v_mov_b32_dpp v{vP+2}, v{vP} quad_perm:[1,1,3,3] {dpp}")
    e("  s_mov_b32 exec_lo, 0x55555555")
    e("  s_mov_b32 exec_hi, 0x55555555")
    e("  s_waitcnt vmcnt(0)")
    e(f"  buffer_store_dwordx4 {Rg(vP)}, v{vT2}, {SR(sWS)}, s{sOFF1} offen sc1")
    e("  s_mov_b64 exec, -1")
    stamp(2)
    QX = vD
    e("L_qpass:")
    e(f"  s_mov_b32 s{sPOLL}, 0")
    if qsleep[0]: e(f"  s_sleep {qsleep[0]}")
    e("L_qpoll:")
    e(f"  buffer_load_dwordx4 {Rg(QX)}, v{vVOFF}, {SR(sWS)}, s{sOFF0} offen sc1")
    e(f"  buffer_load_dwordx4 {Rg(QX+4)}, v{vVOFF}, {SR(sWS)}, s{sOFF0} offen offset:1024 sc1")
    e(f"  s_add_u32 s{sPOLL}, s{sPOLL}, 1")
    e("  s_waitcnt vmcnt(0)")
    e(f"  v_xor_b32 v{vT3}, s{sTAG}, v{QX+1}")
    e(f"  v_xor_b32 v{vT2}, s{sTAG}, v{QX+3}")
    e(f"  v_xor_b32 v{vT5}, s{sTAG}, v{QX+5}")
    e(f"  v_xor_b32 v{vT1}, s{sTAG}, v{QX+7}")
    e(f"  v_or3_b32 v{vT3}, v{vT3}, v{vT2}, v{vT5}")
    e(f"  v_or_b32 v{vT3}, v{vT3}, v{vT1}")
    e(f"  v_cmp_ne_u32 vcc, 0, v{vT3}")
    e(f"  s_cmp_ge_u32 s{sPOLL}, {POLL_MAX}")
    e("  s_cbranch_scc1 L_qok")
    e("  s_cbranch_vccz L_qok")
    e("  s_mov_b64 exec, vcc")
    if qsleep[1]: e(f"  s_sleep {qsleep[1]}")
    e("  s_branch L_qpoll")
    e("L_qok:")
    e("  s_mov_b64 exec, -1")
    e(f"  ds_write2_b32 v{vB}, v{QX}, v{QX+2} offset0:0 offset1:1")
    e(f"  ds_write2_b32 v{vB}, v{QX+4}, v{QX+6} offset0:128 offset1:129")
    lds_inc(F_QRDY)
    e(f"  s_cmp_lg_u32 s{sPH}, 0")
    e("  s_cbranch_scc1 L_qdone")
    stamp(3)
    e(f"  s_mov_b32 s{sPH}, 1")
    e(f"  s_add_u32 s{sOFF0}, s{sOFF0}, 65536")
    e(f"  v_add_u32 v{vB}, 1024, v{vB}")
    e("  s_waitcnt lgkmcnt(0)")
    e("  s_branch L_qpass")
    e("L_qdone:")
    stamp(4)
    A = vD; ML = vVT
    e(f"  v_lshlrev_b32 v{vT0}, 5, v{vLANE}")
    e(f"  v_lshl_add_u32 v{vT0}, v{vG}, 4, v{vT0}")
    e(f"  v_lshlrev_b32 v{vT1}, 4, v{vG}")
    e(f"  s_mov_b32 s{sT}, 2")
    e("L_cpass:")
    lds_wait("L_slw", vZ, F_SL, f"s{sT}")
    stamp(6)
    e(f"  ds_read_b128 {Rg(ML)}, v{vT1} offset:{L_ML}")
    for w in range(C):
        e(f"  ds_read_b128 {Rg(A+8*w)}, v{vT0} offset:{L_SLAB+w*SLAB_STRIDE}")
        e(f"  ds_read_b128 {Rg(A+8*w+4)}, v{vT0} offset:{L_SLAB+w*SLAB_STRIDE+16}")
    e(f"  s_waitcnt lgkmcnt({2*C})")
    e(f"  v_max_f32 v{vM}, v{ML}, v{ML+2}")
    for w in range(C):
        e(f"  v_sub_f32 v{ML+2*w}, v{ML+2*w}, v{vM}")
    for w in range(C):
        e(f"  v_mul_f32 v{ML+2*w}, s{sC}, v{ML+2*w}")
    for w in range(C):
        e(f"  v_exp_f32 v{ML+2*w}, v{ML+2*w}")
    e(f"  v_mul_f32 v{vM}, s{sC}, v{vM}")
    e(f"  v_mul_f32 v{vL}, v{ML}, v{ML+1}")
    e(f"  v_fmac_f32 v{vL}, v{ML+2}, v{ML+3}")
    e(f"  v_rcp_f32 v{vT2}, v{vL}")
    e(f"  v_min_u32 v{vM}, -2, v{vM}")
    e(f"  v_mul_f32 v{ML}, v{ML}, v{vT2}")
    e(f"  v_mul_f32 v{ML+2}, v{ML+2}, v{vT2}")
    e(f"  v_min_u32 v{vL}, -2, v{vL}")
    e("  s_waitcnt lgkmcnt(0)")
    for k in range(8):
        e(f"  v_mul_f32 v{A+k}, v{A+k}, v{ML}")
    for k in range(8):
        e(f"  v_fmac_f32 v{A+k}, v{A+8+k}, v{ML+2}")
    for x in range(4):
        e(f"  v_cvt_pk_bf16_f32 v{vP+x}, v{A+2*x}, v{A+2*x+1}")
    for x in range(4):
        e(f"  v_min_u32 v{vP+x}, -2, v{vP+x}")
    e(f"  buffer_store_dwordx4 {Rg(vP)}, v{vT4}, {SR(sWS)}, s{sA0} offen {sf}")
    e("  s_mov_b32 exec_lo, 0x00010001")
    e("  s_mov_b32 exec_hi, 0x00010001")
    e(f"  buffer_store_dwordx2 {Rg(vM,2)}, v{vA}, {SR(sWS)}, s{sA1} offen {sf}")
    lds_inc(F_PUB)
    e(f"  s_cmp_lg_u32 s{sT}, 2")
    e(f"  s_cbranch_scc1 {FINL}")
    stamp(5)
    e(f"  s_mov_b32 s{sT}, 4")
    e(f"  s_mov_b32 s{sA0}, s{sA2}")
    e(f"  s_mov_b32 s{sA1}, s{sA3}")
    e("  s_waitcnt vmcnt(0)")
    e("  s_branch L_cpass")

    e("L_cons:")
    sLIMC, sPI = sA0, sA1
    e(f"  v_lshlrev_b32 v{vT0}, 2, v{vJ}")
    e(f"  ds_write_b32 v{vT0}, v{vZ}")
    e(f"  s_sub_u32 s{sT}, s{sW}, 1")
    e(f"  s_lshl_b32 s{sSLOT}, s{sT}, 14")
    e(f"  s_add_u32 s{sSLOT}, s{sSLOT}, {L_RING}")
    e(f"  s_lshl_b32 s{sTMP}, s{sT}, 2")
    e(f"  v_mov_b32 v{vKOFF}, s{sTMP}")
    e(f"  v_lshlrev_b32 v{vT0}, 10, v{vT1}")
    e(f"  v_lshl_add_u32 v{vT0}, v{vT2}, 8, v{vT0}")
    for u in range(4):
        e(f"  v_add_u32 v{vT3}, {4*u}, v{vG}")
        e(f"  v_xor_b32 v{vT3}, v{vT3}, v{vJ}")
        e(f"  v_lshl_add_u32 v{vR+u}, v{vT3}, 4, v{vT0}")
    e(f"  v_lshlrev_b32 v{vB}, 4, v{vT1}")
    e(f"  v_lshl_add_u32 v{vB}, v{vG}, 6, v{vB}")
    e("  s_waitcnt lgkmcnt(0)")
    e("  s_barrier")
    def land_wait(label, dyn=False):
        e(f"  s_add_u32 s{sOFF0}, s{sT}, 1")
        if not dyn:
            lds_wait(label, vZ, F_LAND, f"s{sOFF0}")
            return
        e(f"  s_mov_b32 s{sPOLL}, 0")
        e(f"{label}:")
        e(f"  ds_read_b64 {Rg(vT4,2)}, v{vZ} offset:{F_LAND}")
        e(f"  s_add_u32 s{sPOLL}, s{sPOLL}, 1")
        e("  s_waitcnt lgkmcnt(0)")
        e(f"  v_readfirstlane_b32 s{sTMP}, v{vT4}")
        e(f"  v_readfirstlane_b32 s{sLIMC}, v{vT5}")
        e(f"  s_cmp_ge_u32 s{sPOLL}, {POLL_MAX}")
        e("  s_cbranch_scc1 L_cflush")
        e(f"  s_sub_u32 s{sLIMC}, s{sLIMC}, 1")
        e(f"  s_cmp_ge_i32 s{sTMP}, s{sOFF0}")
        e(f"  s_cbranch_scc1 {label}_ok")
        e(f"  s_cmp_lt_u32 s{sLIMC}, s{sT}")
        e("  s_cbranch_scc1 L_cflush")
        e("  s_sleep 1")
        e(f"  s_branch {label}")
        e(f"{label}_ok:")
    def release():
        e(f"  v_mov_b32 v{vT0}, s{sOFF0}")
        e("  s_waitcnt lgkmcnt(0)")
        e(f"  ds_write_b32 v{vKOFF}, v{vT0} offset:{F_FREE}")
    def advance():
        e(f"  s_add_u32 s{sSLOT}, s{sSLOT}, {C*16384}")
        e(f"  s_cmp_ge_u32 s{sSLOT}, {LDS_BYTES}")
        e(f"  s_cselect_b32 s{sTMP}, {R*16384}, 0")
        e(f"  s_sub_u32 s{sSLOT}, s{sSLOT}, s{sTMP}")
        e(f"  s_add_u32 s{sT}, s{sT}, {C}")
    def kaddr():
        for u in range(4):
            e(f"  v_add_u32 v{vR+4+u}, s{sSLOT}, v{vR+u}")
    def kreads(nT):
        for T in range(nT):
            for u in range(4):
                e(f"  ds_read_b128 {Rg(vD+4*(4*T+u))}, v{vR+4+u} offset:{4096*T}")
    def qk(nT):
        for u in range(4):
            for T in range(nT):
                c = "0" if u == 0 else Rg(vS+4*T)
                e(f"  v_mfma_f32_16x16x32_bf16 {Rg(vS+4*T)}, {Rg(vD+4*(4*T+u))}, {Rg(vQ+4*u)}, {c}")
    def softmax(n):
        vals = [vS + k for k in range(n)] + [vM]
        e(f"  v_max3_f32 v{vT0}, v{vals[0]}, v{vals[1]}, v{vals[2]}")
        e(f"  v_max3_f32 v{vT1}, v{vals[3]}, v{vals[4]}, v{vals[5]}")
        rest = vals[6:]; k = 0
        while len(rest) >= 2:
            t = (vT0, vT1)[k % 2]
            e(f"  v_max3_f32 v{t}, v{t}, v{rest[0]}, v{rest[1]}"); rest = rest[2:]; k += 1
        e(f"  v_max3_f32 v{vT0}, v{vT0}, v{vT1}, v{rest[0]}")
        for op in ("v_permlane16_swap_b32", "v_permlane32_swap_b32"):
            e(f"  v_mov_b32 v{vT1}, v{vT0}")
            nop(2)
            e(f"  {op} v{vT0}, v{vT1}")
            nop(1)
            e(f"  v_max_f32 v{vT0}, v{vT0}, v{vT1}")
        e(f"  v_cmp_neq_f32 vcc, v{vT0}, v{vM}")
        e(f"  v_sub_f32 v{vT2}, v{vM}, v{vT0}")
        e(f"  v_mul_f32 v{vT2}, s{sC}, v{vT2}")
        e(f"  v_exp_f32 v{vT2}, v{vT2}")
        e(f"  v_mov_b32 v{vM}, v{vT0}")
        e(f"  v_mul_f32 v{vT3}, s{sC}, v{vT0}")
        for k in range(n):
            e(f"  v_fma_f32 v{vS+k}, v{vS+k}, s{sC}, -v{vT3}")
        for k in range(n):
            e(f"  v_exp_f32 v{vS+k}, v{vS+k}")
        e(f"  v_mul_f32 v{vL}, v{vL}, v{vT2}")
        for x in range(n // 2):
            e(f"  v_cvt_pk_bf16_f32 v{vP+x}, v{vS+2*x}, v{vS+2*x+1}")
        st = 1
        while st < n:
            for k in range(0, n, 2*st):
                e(f"  v_add_f32 v{vS+k}, v{vS+k}, v{vS+k+st}")
            st *= 2
        e(f"  v_add_f32 v{vL}, v{vL}, v{vS}")
    def perms(base):
        for d in range(8):
            w_, sel = d >> 1, (sSELHI if d & 1 else sSELLO)
            for x in range(4):
                e(f"  v_perm_b32 v{vVT+4*d+x}, v{base+4*(2*x+1)+w_}, v{base+4*(2*x)+w_}, s{sel}")
    def rescale(label):
        e(f"  s_cbranch_vccz {label}")
        for k in range(32):
            e(f"  v_mul_f32 v{vO+k}, v{vO+k}, v{vT2}")
        nop(2)
        e(f"{label}:")
    def pv(p):
        for d in range(8):
            e(f"  v_mfma_f32_16x16x32_bf16 {Rg(vO+4*d)}, {Rg(vVT+4*d)}, {Rg(p)}, {Rg(vO+4*d)}")
    e(f"  s_mov_b32 s{sLIMC}, 32")
    e("L_cprob:")
    e(f"  v_mov_b32 v{vM}, {f32bits(-1e30):#x}")
    e(f"  v_mov_b32 v{vL}, 0")
    for k in range(32): e(f"  v_mov_b32 v{vO+k}, 0")
    e(f"  s_sub_u32 s{sPI}, s{sW}, 1")
    e(f"  s_mov_b32 s{sNEXT}, 1")
    e("L_kloop:")
    kaddr()
    land_wait("L_kland")
    kreads(4)
    release()
    e(f"  s_cmp_eq_u32 s{sNEXT}, 0")
    e("  s_cbranch_scc1 L_haveq")
    e(f"  s_mov_b32 s{sNEXT}, 0")
    e(f"  s_add_u32 s{sOFF1}, s{sPH}, 1")
    lds_wait("L_qwait", vZ, F_QRDY, f"s{sOFF1}")
    e(f"  v_lshlrev_b32 v{vT0}, 8, v{vLANE}")
    e(f"  v_and_b32 v{vT0}, 0x300, v{vT0}")
    e(f"  v_lshl_add_u32 v{vT0}, v{vG}, 4, v{vT0}")
    e(f"  s_lshl_b32 s{sTMP}, s{sPH}, 10")
    e(f"  v_add_u32 v{vT0}, s{sTMP}, v{vT0}")
    for u in range(4):
        e(f"  ds_read_b128 {Rg(vQ+4*u)}, v{vT0} offset:{L_QF+64*u}")
    e("  s_waitcnt lgkmcnt(0)")
    stamp(2)
    e("L_haveq:")
    qk(4)
    e(f"  s_lshl_b32 s{sTMP}, s{sPI}, 9")
    e(f"  v_add_u32 v{vA}, s{sTMP}, v{vB}")
    e(f"  s_lshl_b32 s{sTMP}, s{sPI}, 4")
    e(f"  v_lshl_add_u32 v{vT4}, v{vJ}, 2, s{sTMP}")
    nop(6)
    softmax(16)
    e("  s_mov_b32 exec_lo, 0x000f000f")
    e("  s_mov_b32 exec_hi, 0x000f000f")
    e(f"  ds_write_b128 v{vA}, {Rg(vP)} offset:{L_P}")
    e(f"  ds_write_b128 v{vA}, {Rg(vP+4)} offset:{L_P+256}")
    e("  s_mov_b64 exec, 15")
    e(f"  ds_write_b32 v{vT4}, v{vT2} offset:{L_AL}")
    e("  s_mov_b64 exec, -1")
    e(f"  s_add_u32 s{sPI}, s{sPI}, {C}")
    advance()
    e(f"  s_cmp_lt_u32 s{sPI}, s{sLIMC}")
    e("  s_cbranch_scc1 L_kloop")
    e(f"  s_sub_u32 s{sPI}, s{sW}, 1")
    e("L_vloop:")
    e(f"  v_add_u32 v{vR+4}, s{sSLOT}, v{vVOFF}")
    e(f"  s_lshl_b32 s{sTMP}, s{sPI}, 9")
    e(f"  v_add_u32 v{vA}, s{sTMP}, v{vB}")
    e(f"  s_lshl_b32 s{sTMP}, s{sPI}, 4")
    e(f"  v_and_b32 v{vT4}, 3, v{vLANE}")
    e(f"  v_lshl_add_u32 v{vT4}, v{vT4}, 2, s{sTMP}")
    e(f"  ds_read_b128 {Rg(vP)}, v{vA} offset:{L_P}")
    e(f"  ds_read_b128 {Rg(vP+4)}, v{vA} offset:{L_P+256}")
    e(f"  ds_read_b32 v{vT2}, v{vT4} offset:{L_AL}")
    land_wait("L_vland")
    for j in range(16):
        e(f"  ds_read_b128 {Rg(vD+4*j)}, v{vR+4} offset:{1024*j}")
    e(f"  v_cmp_neq_f32 vcc, 1.0, v{vT2}")
    rescale("L_vnores")
    release()
    perms(vD)
    nop(2)
    pv(vP)
    perms(vD + 32)
    nop(2)
    pv(vP + 4)
    e(f"  s_add_u32 s{sPI}, s{sPI}, {C}")
    advance()
    e(f"  s_cmp_lt_u32 s{sPI}, s{sLIMC}")
    e("  s_cbranch_scc1 L_vloop")
    e(f"  s_cmp_eq_u32 s{sPH}, 0")
    e("  s_cbranch_scc1 L_cflush")
    stamp(3)
    lds_wait("L_slfree", vZ, F_PUB, 1)
    if ND:
        e("L_mloop:")
        kaddr()
        e(f"  v_add_u32 v{vA}, s{sSLOT}, v{vVOFF}")
        land_wait("L_mland", dyn=True)
        kreads(2)
        for j in range(8):
            e(f"  ds_read_b128 {Rg(vD+32+4*j)}, v{vA} offset:{8192+1024*j}")
        release()
        qk(2)
        perms(vD + 32)
        softmax(8)
        rescale("L_mnores")
        pv(vP)
        advance()
        e(f"  s_cmp_ge_u32 s{sLIMC}, s{sT}")
        e("  s_cbranch_scc1 L_mloop")
    e("L_cflush:")
    e(f"  v_mov_b32 v{vT1}, v{vL}")
    e(f"  v_mul_u32_u24 v{vT0}, {HEAD_STRIDE}, v{vJ}")
    e(f"  v_lshl_add_u32 v{vT0}, v{vG}, 7, v{vT0}")
    e(f"  v_permlane16_swap_b32 v{vL}, v{vT1}")
    e(f"  s_sub_u32 s{sTMP2}, s{sW}, 1")
    e(f"  v_add_f32 v{vL}, v{vL}, v{vT1}")
    e(f"  v_mov_b32 v{vT1}, v{vL}")
    e(f"  s_mul_i32 s{sTMP}, s{sTMP2}, {SLAB_STRIDE}")
    e(f"  v_add_u32 v{vT0}, s{sTMP}, v{vT0}")
    e(f"  v_permlane32_swap_b32 v{vL}, v{vT1}")
    e(f"  s_lshl_b32 s{sTMP}, s{sTMP2}, 3")
    e(f"  v_add_f32 v{vL}, v{vL}, v{vT1}")
    e(f"  v_lshlrev_b32 v{vT1}, 4, v{vJ}")
    e(f"  v_add_u32 v{vT1}, s{sTMP}, v{vT1}")
    e("  s_mov_b32 exec_lo, 0x000f000f")
    e("  s_mov_b32 exec_hi, 0x000f000f")
    for d in range(8):
        e(f"  ds_write_b128 v{vT0}, {Rg(vO+4*d)} offset:{L_SLAB+16*d}")
    e("  s_mov_b64 exec, 15")
    e(f"  ds_write_b64 v{vT1}, {Rg(vM,2)} offset:{L_ML}")
    lds_inc(F_SL)
    e(f"  s_cmp_lg_u32 s{sPH}, 0")
    e(f"  s_cbranch_scc1 {FINL}")
    stamp(1)
    e(f"  s_mov_b32 s{sPH}, 1")
    e(f"  s_mov_b32 s{sLIMC}, {NSB}")
    e("  s_waitcnt lgkmcnt(0)")
    e("  s_branch L_cprob")
    if stamps:
        e("L_fin:")
        stamp(7)
        e("  s_waitcnt lgkmcnt(0)")
        e(f"  s_mov_b32 s{sWS+2}, {WS_BYTES}")
        e(f"  s_lshl_b32 s{sTMP}, s2, 3")
        e(f"  s_add_u32 s{sTMP}, s{sTMP}, s{sW}")
        e(f"  s_lshl_b32 s{sTMP}, s{sTMP}, 6")
        e(f"  s_add_u32 s{sTMP}, s{sTMP}, {STAMP_OFF}")
        e("  s_mov_b64 exec, 1")
        for k in range(16): e(f"  v_mov_b32 v{vVT+k}, s{sST+k}")
        for k in range(4): e(f"  buffer_store_dwordx4 {Rg(vVT+4*k)}, v{vZ}, {SR(sWS)}, s{sTMP} offen offset:{16*k}")
    e("L_end:")
    e("  s_endpgm")
    e('.section .rodata,"a"')
    e(".p2align 6")
    e(f".amdhsa_kernel {NAME}_kernel")
    e(f"  .amdhsa_next_free_vgpr {NV}")
    e("  .amdhsa_next_free_sgpr 102")
    e(f"  .amdhsa_accum_offset {(NV+3)//4*4}")
    e("  .amdhsa_group_segment_fixed_size 0")
    e("  .amdhsa_kernarg_size 104")
    e("  .amdhsa_user_sgpr_count 2")
    e("  .amdhsa_user_sgpr_kernarg_segment_ptr 1")
    e("  .amdhsa_system_sgpr_workgroup_id_x 1")
    e(".end_amdhsa_kernel")
    return "\n".join(L) + "\n"

if __name__ == "__main__":
    os.makedirs("exp", exist_ok=True)
    L_ = dict(stamps=True, light=True)
    V = {
        "k5": dict(),
        "k5_lt": dict(**L_),
        "k5_a": dict(rdelay=40, **L_),
        "k5_b": dict(pre2="sc1", **L_),
        "k5_c": dict(pre2="sc1", rdelay=12, **L_),
        "k5_d": dict(pre2="wsc1", **L_),
        "k5_e": dict(lf="sc0 sc1", sf="sc0 sc1", **L_),
        "k5_f": dict(pre2="wsc1", rdelay=12, **L_),
    }
    for n, kw in V.items():
        open(f"exp/{n}.s", "w").write(gen(**kw))
    print(" ".join(f"exp/{n}.s" for n in V)); print(", ".join(f'"exp/{n}.s"' for n in V))
    if len(sys.argv) > 1 and sys.argv[1] == "install":
        open(f"cdna_kernels/{NAME}.s", "w").write(gen())
```
